```python
import torch

def _softmax(x, axis=-1):
    return torch.softmax(x, dim=axis)

def _gelu(x):
    return torch.nn.functional.gelu(x, approximate='tanh')

def _silu(x):
    return torch.nn.functional.silu(x)

def _sigmoid(x):
    return torch.sigmoid(x)

def _layernorm(x, axis=-1, eps=1e-05):
    m = x.mean(dim=axis, keepdim=True)
    v = x.var(dim=axis, keepdim=True, unbiased=False)
    return (x - m) / torch.sqrt(v + eps)

def _scatter_add(tgt, idx, src, axis=0):
    return tgt.clone().index_add_(axis, idx, src)

def _segment_sum(src, seg, n):
    out = torch.zeros((n,) + src.shape[1:], dtype=src.dtype)
    return out.index_add_(0, seg, src)

def _pad(x, pw):
    flat = tuple((v for pair in reversed(pw) for v in pair))
    return torch.nn.functional.pad(x, flat)
kernel_name = 'standalone__tensor_product_equiv_equiformer__graph'

def setup_inputs():

    _w = lambda a: (lambda t: t.to(torch.bfloat16) if t.is_floating_point() else t)(torch.as_tensor(a))
    N, deg, C, De = (10000, 64, 64, max(0, 1))
    E = N * deg
    src = (lambda lo, hi, *s: torch.randint(lo, hi, s))(0, N, E).to(torch.int64)
    dst = (lambda lo, hi, *s: torch.randint(lo, hi, s))(0, N, E).to(torch.int64)
    rvec = (lambda *s: torch.randn(*s, dtype=torch.bfloat16) * 0.05)(E, 3).to(float)
    rn = (torch.linalg.norm(rvec, dim=-1, keepdim=True) + 1e-06).to(float)
    rhat = (rvec / rn).to(float)
    eps = torch.zeros((3, 3, 3), dtype=float)
    eps[0, 1, 2] = eps[1, 2, 0] = eps[2, 0, 1] = 1.0
    eps[0, 2, 1] = eps[2, 1, 0] = eps[1, 0, 2] = -1.0
    return {'x': _w((lambda *s: torch.randn(*s, dtype=torch.bfloat16) * 0.4)(N, 4 * C).to(float)), 'rhat': _w(rhat), 'e_attr': _w((lambda *s: torch.randn(*s, dtype=torch.bfloat16) * 0.4)(E, De).to(float)), 'src': _w(src), 'dst': _w(dst), 'w_rad': _w((lambda *s: torch.randn(*s, dtype=torch.bfloat16) * 0.4)(De, 5 * C).to(float)), 'w_si0': _w((lambda *s: torch.randn(*s, dtype=torch.bfloat16) * 0.4)(2 * C, C).to(float)), 'w_si1': _w((lambda *s: torch.randn(*s, dtype=torch.bfloat16) * 0.05)(3 * C, C).to(float)), 'cg_eps': _w(eps)}

def reference(x, rhat, e_attr, src, dst, w_rad, w_si0, w_si1, cg_eps):
    N = x.shape[0]
    C = w_si0.shape[1]
    E = rhat.shape[0]
    x0 = x[:, :C].clone()
    x1 = x[:, C:].reshape(N, 3, C)
    R = (e_attr @ w_rad).reshape(E, 5, C)
    f0 = x0[src]
    f1 = x1[src]
    Y1 = rhat
    p00_0 = f0 * R[:, 0, :]
    p11_0 = torch.einsum('ejc,ej->ec', f1, Y1) * R[:, 1, :]
    p01_1 = torch.einsum('ec,ej->ejc', f0, Y1) * R[:, 2, :][:, None, :]
    p10_1 = f1 * R[:, 3, :][:, None, :]
    p11_1 = torch.einsum('ijk,ekc,ej->eic', cg_eps, f1, Y1) * R[:, 4, :][:, None, :]
    m0 = torch.concatenate([p00_0, p11_0], axis=-1) @ w_si0
    m1 = torch.einsum('ejp,pc->ejc', torch.concatenate([p01_1, p10_1, p11_1], axis=-1), w_si1)
    agg0 = _segment_sum(m0, dst, N)
    agg1 = _segment_sum(m1.reshape(E, 3 * C), dst, N).reshape(N, 3, C)
    gate = _sigmoid(agg0)
    out1 = agg1 * gate[:, None, :]
    return torch.concatenate([agg0, out1.reshape(N, 3 * C)], axis=-1)
```

```python
import sys, argparse

NAME = "standalone__tensor_product_equiv_equiformer__graph"

class Asm:
    def __init__(self):
        self.lines = []
    def __call__(self, s):
        for l in s.strip("\n").split("\n"):
            l = l.strip()
            if not l:
                continue
            if l.endswith(":") or l.startswith("."):
                self.lines.append(l)
            else:
                self.lines.append("    " + l)
    def text(self):
        return "\n".join(self.lines) + "\n"

class Regs:
    def __init__(self, prefix, start=0):
        self.p = prefix; self.n = start; self.hi = start
    def get(self, cnt=1, align=1):
        self.n = (self.n + align - 1) // align * align
        r = self.n; self.n += cnt; self.hi = max(self.hi, self.n)
        return r

def vr(a, n=1):
    return f"v{a}" if n == 1 else f"v[{a}:{a+n-1}]"
def sr(a, n=1):
    return f"s{a}" if n == 1 else f"s[{a}:{a+n-1}]"

NPROD = 250
CHUNK = 2560
RECB = CHUNK * 12
WS_REC = 0
WS_WF = NPROD * RECB
WS_OFF = WS_WF + 40 * 1024
WS_END = WS_OFF + NPROD * 1024
WS_TS = 0x1000000

def dpp_scan(a, v, full=True):
    for sh in (1, 2, 4, 8):
        a(f"s_nop 1\nv_add_u32_dpp v{v}, v{v}, v{v} row_shr:{sh} row_mask:0xf bank_mask:0xf")
    a(f"s_nop 1\nv_add_u32_dpp v{v}, v{v}, v{v} row_bcast:15 row_mask:0xa bank_mask:0xf")
    if full:
        a(f"s_nop 1\nv_add_u32_dpp v{v}, v{v}, v{v} row_bcast:31 row_mask:0xc bank_mask:0xf")

class Stamps:
    def __init__(self, on, base_s, slot):
        self.on = on; self.base = base_s; self.n = 0; self.slot = slot
    def stamp(self, a):
        if not self.on: return
        a(f"s_memrealtime s[{self.base+2*self.n}:{self.base+2*self.n+1}]")
        self.n += 1
    def dump(self, a, ws_pair, vt, tag, wave_s=None):
        if not self.on: return
        a(f"""s_waitcnt lgkmcnt(0)
        s_mov_b64 exec, 1
        s_lshl_b32 s3, s2, 10
        s_add_u32 s3, s3, {WS_TS + self.slot*0x40000}""")
        if wave_s is not None:
            a(f"s_lshl_b32 s{wave_s}, s{wave_s}, 6\ns_add_u32 s3, s3, s{wave_s}")
        a(f"v_mov_b32 v{vt}, s3")
        for i in range(self.n):
            a(f"v_mov_b32 v{vt+1}, s{self.base+2*i}\nglobal_store_dword v{vt}, v{vt+1}, s[{ws_pair}:{ws_pair+1}] offset:{4*i}")

def gen_k1(o):
    a = Asm()
    NPH = o.nph
    PHC = {1: 0, 2: 3355, 3: 5033, 4: 6711}[NPH]
    HIST = RECB
    BASE = RECB + 1024
    ld = o.k1ld; st = o.k1st
    T = Stamps(o.diag, 40, 0)
    T.stamp(a)
    a(f"""
    s_cmp_ge_u32 s2, {NPROD}
    s_cbranch_scc1 K1_prep
    s_load_dwordx8 s[4:11], s[0:1], 8
    s_load_dwordx2 s[12:13], s[0:1], 88      ; ws
    v_lshrrev_b32 v1, 6, v0
    s_mul_i32 s3, s2, {CHUNK*4}
    v_readfirstlane_b32 s14, v1
    v_lshl_add_u32 v2, v0, 4, s3
    s_cmp_ge_u32 s14, 10
    s_cbranch_scc1 K1_helper
    v_lshrrev_b32 v3, 1, v2
    v_add_u32 v4, v2, v3
    v_mov_b32 v5, 12
    s_waitcnt lgkmcnt(0)
    global_load_dwordx4 v[8:11], v2, s[10:11] {ld}       ; dst
    global_load_dwordx4 v[12:15], v2, s[8:9] {ld}        ; src
    global_load_dwordx2 v[16:17], v3, s[6:7] {ld}        ; e_attr
    global_load_dwordx3 v[18:20], v4, s[4:5] {ld}        ; rhat e0,e1
    global_load_dwordx3 v[22:24], v4, s[4:5] offset:12 {ld}  ; rhat e2,e3
    s_mov_b32 s15, 0xffff0000
    s_movk_i32 s16, {PHC}
    s_barrier
    s_waitcnt vmcnt(4)
    """)
    T.stamp(a)
    for i in range(4):
        a(f"v_lshlrev_b32_sdwa v{26+i}, 2, v{8+i} dst_sel:DWORD dst_unused:UNUSED_PAD src0_sel:DWORD src1_sel:BYTE_0")
        a(f"ds_add_rtn_u32 v{30+i}, v{26+i}, v5 offset:{HIST}")
    a("s_waitcnt lgkmcnt(0)\ns_barrier\ns_waitcnt vmcnt(3)")
    for i in range(4):
        k = 38 + 4 * i
        a(f"v_mul_u32_u24 v{k}, s16, v{12+i}")
        a(f"v_lshlrev_b32_sdwa v{k}, 6, v{k} dst_sel:DWORD dst_unused:UNUSED_PAD src0_sel:DWORD src1_sel:BYTE_3")
        a(f"v_or_b32_sdwa v{k}, v{k}, v{8+i} dst_sel:DWORD dst_unused:UNUSED_PAD src0_sel:DWORD src1_sel:BYTE_1")
        a(f"v_lshl_or_b32 v{k}, v{12+i}, 16, v{k}")
    a("s_waitcnt vmcnt(1)")
    def unpack(dst, src, hi):
        a(f"v_and_b32 v{dst}, s15, v{src}" if hi else f"v_lshlrev_b32 v{dst}, 16, v{src}")
    for i in range(4):
        if i == 2:
            a("s_waitcnt vmcnt(0)")
            T.stamp(a)
        R = 18 if i < 2 else 22
        c = 36 + 4 * i
        unpack(8, 16 + i // 2, i & 1)
        for j in range(3):
            el = 3 * (i & 1) + j
            unpack(9 + j, R + el // 2, el & 1)
        for j in range(3):
            a(f"v_mul_f32 v{9+j}, v8, v{9+j}")
        a(f"v_cvt_pk_bf16_f32 v{c}, v8, v9")
        a(f"v_cvt_pk_bf16_f32 v{c+1}, v10, v11")
    a("s_barrier")
    T.stamp(a)
    for i in range(4):
        a(f"ds_read_b32 v{26+i}, v{26+i} offset:{BASE}")
    a(f"v_lshlrev_b32 v6, 4, v0\ns_mul_i32 s3, s2, {RECB}\nv_add_u32 v7, s3, v6")
    for i in range(4):
        a(f"s_waitcnt lgkmcnt({3 + i})")
        a(f"v_add_u32 v{26+i}, v{26+i}, v{30+i}")
        a(f"ds_write2_b32 v{26+i}, v{36+4*i}, v{37+4*i} offset0:0 offset1:1")
        a(f"ds_write_b32 v{26+i}, v{38+4*i} offset:8")
    a(f"""
    v_add_u32 v20, 10240, v7
    v_add_u32 v21, 20480, v7
    s_waitcnt lgkmcnt(0)
    s_barrier
    """)
    T.stamp(a)
    a(f"""
    ds_read_b128 v[8:11], v6
    ds_read_b128 v[12:15], v6 offset:10240
    ds_read_b128 v[16:19], v6 offset:20480
    s_waitcnt lgkmcnt(2)
    global_store_dwordx4 v7, v[8:11], s[12:13] {st}
    s_waitcnt lgkmcnt(1)
    global_store_dwordx4 v20, v[12:15], s[12:13] {st}
    s_waitcnt lgkmcnt(0)
    global_store_dwordx4 v21, v[16:19], s[12:13] {st}
    """)
    if o.diag:
        T.stamp(a)
        a("s_waitcnt vmcnt(0)")
        T.stamp(a)
        T.dump(a, 12, 30, "k1", wave_s=14)
    a("s_endpgm")

    a(f"""
    K1_helper:
    v_and_b32 v1, 63, v0
    v_lshlrev_b32 v2, 4, v1
    v_mov_b32 v4, 0
    v_mov_b32 v5, 0
    v_mov_b32 v6, 0
    v_mov_b32 v7, 0
    ds_write_b128 v2, v[4:7] offset:{HIST}
    s_lshl_b32 s3, s2, 10
    s_add_u32 s3, s3, {WS_OFF}
    v_add_u32 v3, s3, v2
    s_waitcnt lgkmcnt(0)
    """)
    npf = o.k1pf
    if npf:
        a(f"""
        s_load_dwordx2 s[20:21], s[0:1], 0
        s_lshr_b32 s17, s2, 3
        s_mul_i32 s17, s17, {npf*8192}
        v_lshlrev_b32 v20, 7, v1
        v_add_u32 v20, s17, v20
        s_mov_b32 s22, 5120000
        s_mov_b32 s23, 0x20000
        s_waitcnt lgkmcnt(0)
        """)
    a("s_barrier")
    if npf:
        for i in range(npf):
            a(f"buffer_load_dword v21, v20, s[20:23], 0 offen\nv_add_u32 v20, 8192, v20")
    a(f"""
    s_barrier
    ds_read_b128 v[4:7], v2 offset:{HIST}
    s_waitcnt lgkmcnt(0)
    v_add_u32 v9, v4, v5
    v_add_u32 v10, v9, v6
    v_add_u32 v11, v10, v7
    v_mov_b32 v12, v11
    """)
    dpp_scan(a, 12)
    a(f"""
    v_sub_u32 v16, v12, v11
    v_add_u32 v17, v16, v4
    v_add_u32 v18, v16, v9
    v_add_u32 v19, v16, v10
    ds_write_b128 v2, v[16:19] offset:{BASE}
    v_lshl_or_b32 v4, v4, 16, v16
    v_lshl_or_b32 v5, v5, 16, v17
    v_lshl_or_b32 v6, v6, 16, v18
    v_lshl_or_b32 v7, v7, 16, v19
    s_waitcnt lgkmcnt(0)
    s_barrier
    global_store_dwordx4 v3, v[4:7], s[12:13] {st}
    s_barrier
    s_endpgm
    """)

    a(f"""
    K1_prep:
    s_cmp_ge_u32 s2, {NPROD+4}
    s_cbranch_scc1 K1_end
    s_load_dwordx4 s[4:7], s[0:1], 40
    s_load_dwordx2 s[8:9], s[0:1], 56        ; w_si1
    s_load_dwordx2 s[12:13], s[0:1], 88      ; ws
    v_lshrrev_b32 v1, 6, v0
    s_sub_u32 s15, s2, {NPROD}               ; ct
    v_readfirstlane_b32 s14, v1
    v_and_b32 v1, 63, v0
    s_cmp_ge_u32 s14, 10
    s_cbranch_scc1 K1_end
    v_lshrrev_b32 v2, 4, v1                  ; g
    v_and_b32 v3, 15, v1                     ; m
    s_lshl_b32 s16, s14, 6
    v_lshl_add_u32 v4, v2, 4, s16            ; + 16*g
    s_cmp_lt_u32 s14, 4
    s_cselect_b32 s17, 0, 4
    s_sub_u32 s17, s14, s17
    s_lshl_b32 s17, s17, 12                  ; *32 rows*128 B
    s_lshl_b32 s18, s15, 5
    s_add_u32 s17, s17, s18
    v_lshlrev_b32 v5, 10, v2                 ; g*8 rows*128 B
    v_lshl_add_u32 v5, v3, 1, v5
    v_add_u32 v5, s17, v5
    s_mul_i32 s18, s15, 10
    s_add_u32 s18, s18, s14
    s_lshl_b32 s18, s18, 10
    s_add_u32 s18, s18, {WS_WF}
    v_lshl_add_u32 v6, v1, 4, s18
    s_waitcnt lgkmcnt(0)
    s_cmp_lt_u32 s14, 4
    s_cselect_b32 s10, s6, s8
    s_cselect_b32 s11, s7, s9
    global_load_dwordx4 v[8:11], v4, s[4:5]
    """)
    for i in range(8):
        a(f"global_load_ushort v{12+i}, v5, s[10:11] offset:{128*i}")
    a("s_waitcnt vmcnt(0)")
    for i in range(8):
        a(f"v_lshlrev_b32 v{12+i}, 16, v{12+i}")
        a(f"v_and_b32 v20, 0xffff0000, v{8+i//2}" if i & 1 else f"v_lshlrev_b32 v20, 16, v{8+i//2}")
        a(f"v_mul_f32 v{12+i}, v20, v{12+i}")
    for i in range(4):
        a(f"v_cvt_pk_bf16_f32 v{24+i}, v{12+2*i}, v{13+2*i}")
    a(f"""
    global_store_dwordx4 v6, v[24:27], s[12:13] {st}
    K1_end:
    s_endpgm
    """)
    return a.text(), 56, 64, RECB + 2048

def gen_k2(o):
    a = Asm()
    U = o.u
    NPH = o.nph
    NR = 10
    CAPW = 512
    L_COEF = 0
    L_ZERO = NR * 4096
    L_CNT = L_ZERO + 16
    L_FLAG = L_CNT + 1024
    L_BASE = L_FLAG + 16
    L_KEYS = L_BASE + 1024
    L_T = (L_KEYS + 8 * CAPW * 4 + 255) // 256 * 256
    L_END = L_T + 48 * 2048
    L_OUT = 0
    OSTR = 528
    lds = L_END
    assert lds <= 163840, lds
    DUMMY = 0xFFFF0000 | L_ZERO

    V = Regs("v", 1)
    vt0 = V.get(); vt1 = V.get(); vt2 = V.get(); vt3 = V.get(); vlane = V.get()
    vlo16 = V.get()
    vi12 = V.get()
    vslot = V.get()
    vfour = V.get()
    voffs = V.get()
    vpb = V.get()
    vbase = V.get(); vrem = V.get(); vb1 = V.get(); vr1 = V.get()
    vsteps = V.get(); vka = V.get(); vwf = V.get(); vcidx = V.get()
    vsel = V.get(4)
    vacc = V.get(80, 4)
    vW = V.get(48, 4)
    al = V.get(0, 4)
    vB = V.get(4 * U, 4)
    vC = V.get(2 * U, 2)
    vA = V.get(4, 4)
    vK = V.get(4, 2)
    vga = V.get(); vca = V.get()
    end_main = V.n
    V.n = al
    vrec = V.get(4 * NR, 4)
    vha = V.get(NR)
    V.n = max(V.n, end_main)
    nv = V.hi
    assert nv <= 256, nv

    sX = 4
    sWS = 8
    sO = 12
    sb = 16; sw = 17; sI0 = 18; sW12 = 19; sidx = 20; s512 = 21; st0 = 22; st1 = 23
    scnt = 24
    sret = 30
    smask = 32
    sovf = 52
    smore = 54
    T = Stamps(o.diag, 60, 1)
    T.stamp(a)
    a(f"""
    s_cmp_ge_u32 s2, 256
    s_cbranch_scc1 K2_end
    s_load_dwordx2 s[{sWS}:{sWS+1}], s[0:1], 88
    s_load_dwordx2 s[{sX}:{sX+1}], s[0:1], 0
    s_load_dwordx2 s[{sO}:{sO+1}], s[0:1], 72
    v_lshrrev_b32 v{vt0}, 6, v0
    v_and_b32 v{vlane}, 63, v0
    v_readfirstlane_b32 s{sw}, v{vt0}
    s_and_b32 s{sb}, s2, 7
    s_lshl_b32 s{sb}, s{sb}, 5
    s_lshr_b32 s3, s2, 3
    s_or_b32 s{sb}, s{sb}, s3                      ; bucket
    v_lshrrev_b32 v{vt0}, 4, v0                    ; 4*w + g
    v_and_b32 v{vt1}, 7, v0
    v_lshl_add_u32 v{vt0}, v{vt0}, 3, v{vt1}       ; p = 32w + 8g + (lane&7)
    s_lshl_b32 s3, s{sb}, 2
    s_add_u32 s3, s3, {WS_OFF}
    v_lshl_add_u32 v{vt1}, v{vt0}, 10, s3
    s_mov_b32 s{sWS+2}, {WS_END}
    s_mov_b32 s{sWS+3}, 0x20000
    s_mov_b32 s{sX+2}, 5120000
    s_mov_b32 s{sX+3}, 0x20000
    s_mov_b32 s{sO+2}, 5120000
    s_mov_b32 s{sO+3}, 0x20000
    s_waitcnt lgkmcnt(0)
    buffer_load_dword v{voffs}, v{vt1}, s[{sWS}:{sWS+3}], 0 offen
    v_mul_u32_u24 v{vpb}, {RECB}, v{vt0}
    v_and_b32 v{vt1}, 15, v0
    v_mul_u32_u24 v{vi12}, 12, v{vt1}
    v_lshlrev_b32 v{vslot}, 3, v0
    v_mov_b32 v{vfour}, 4
    v_and_b32 v{vt1}, 31, v0
    v_lshlrev_b32 v{vlo16}, 4, v{vt1}
    s_movk_i32 s{s512}, 512
    s_mov_b32 s{sI0}, 0
    s_movk_i32 s{sW12}, 384
    s_and_b32 s3, s{sw}, 3
    s_mul_i32 s3, s3, 10240
    s_add_u32 s3, s3, {WS_WF}
    v_lshl_add_u32 v{vwf}, v{vlane}, 4, s3
    v_lshrrev_b32 v{vt0}, 3, v{vt1}
    v_lshlrev_b32 v{vt0}, 6, v{vt0}
    v_and_b32 v{vt2}, 7, v0
    v_lshl_add_u32 v{vt0}, v{vt2}, 3, v{vt0}
    v_add_lshl_u32 v{vcidx}, v{vt0}, s{sw}, 2
    v_lshrrev_b32 v{vt0}, 4, v{vt1}
    v_bfe_u32 v{vt2}, v{vt1}, 2, 1
    v_lshl_add_u32 v{vt0}, v{vt0}, 1, v{vt2}       ; p
    v_mul_u32_u24 v{vt0}, 0x202, v{vt0}
    v_add_u32 v{vt0}, 0x0c0c0100, v{vt0}
    v_and_b32 v{vt2}, 1, v0
    v_lshlrev_b32 v{vt2}, 4, v{vt2}
    v_alignbit_b32 v{vt0}, v{vt0}, v{vt0}, v{vt2}
    v_bfe_u32 v{vt2}, v{vt1}, 3, 1
    v_bfe_u32 v{vt3}, v{vt1}, 1, 1
    v_lshl_add_u32 v{vt2}, v{vt2}, 1, v{vt3}       ; j>>1
    v_mov_b32 v{vt3}, 0x0c0c0c0c
    """)
    for r in range(4):
        a(f"v_cmp_eq_u32 vcc, {r}, v{vt2}\ns_nop 1\nv_cndmask_b32 v{vsel+r}, v{vt3}, v{vt0}, vcc")
    for i in range(80):
        a(f"v_mov_b32 v{vacc+i}, 0")
    a(f"""
    K2_batch:
    v_lshlrev_b32 v{vt0}, 2, v0
    v_mov_b32 v{vt1}, 0
    v_cmp_gt_u32 vcc, {(L_BASE - L_ZERO)//4}, v0
    s_mov_b64 exec, vcc
    ds_write_b32 v{vt0}, v{vt1} offset:{L_ZERO}
    s_mov_b64 exec, -1
    s_waitcnt lgkmcnt(0)
    s_barrier
    """)
    NW1 = o.nw1
    for i in range(NW1):
        a(f"buffer_load_dwordx4 v[{vW+4*i}:{vW+4*i+3}], v{vwf}, s[{sWS}:{sWS+3}], 0 offen offset:{1024*i}" if i < 4 else
          f"s_movk_i32 s3, {1024*i}\nbuffer_load_dwordx4 v[{vW+4*i}:{vW+4*i+3}], v{vwf}, s[{sWS}:{sWS+3}], s3 offen")
    a(f"s_waitcnt vmcnt({NW1})")
    T.stamp(a)
    a(f"""
    v_and_b32 v{vt0}, 0xffff, v{voffs}
    v_lshrrev_b32 v{vt1}, 16, v{voffs}
    v_add3_u32 v{vbase}, v{vpb}, v{vt0}, s{sI0}
    v_subrev_u32 v{vt1}, s{sI0}, v{vt1}
    v_min_i32 v{vrem}, s{sW12}, v{vt1}
    v_cmp_lt_i32 s[{smore}:{smore+1}], s{sW12}, v{vt1}
    """)
    for r in range(8):
        a(f"""
        v_add_u32_dpp v{vha+r}, v{vbase}, v{vi12} row_newbcast:{r} row_mask:0xf bank_mask:0xf
        v_sub_u32_dpp v{vt0}, v{vrem}, v{vi12} row_newbcast:{r} row_mask:0xf bank_mask:0xf
        v_cmp_lt_i32 s[{smask+2*r}:{smask+2*r+1}], 0, v{vt0}
        s_or_b64 exec, s[{smask+2*r}:{smask+2*r+1}], 1
        buffer_load_dwordx3 v[{vrec+4*r}:{vrec+4*r+2}], v{vha+r}, s[{sWS}:{sWS+3}], 0 offen
        s_mov_b64 exec, -1
        """)
    a(f"""
    v_subrev_u32 v{vr1}, 192, v{vrem}
    v_add_u32 v{vb1}, 192, v{vbase}
    v_cmp_lt_i32 vcc, 0, v{vr1}
    s_mov_b32 s{st0}, 0x00ff00ff
    s_and_b32 s{sovf}, vcc_lo, s{st0}
    s_and_b32 s{sovf+1}, vcc_hi, s{st0}
    v_mbcnt_lo_u32_b32 v{vt0}, s{sovf}, 0
    v_mbcnt_hi_u32_b32 v{vt0}, s{sovf+1}, v{vt0}
    v_and_b32 v{vt1}, 3, v{vt0}
    v_and_b32 v{vt0}, 28, v{vt0}
    v_lshl_add_u32 v{vt0}, v{vt1}, 6, v{vt0}
    v_mov_b32 v{vt1}, 60
    v_cndmask_b32 v{vt0}, v{vt1}, v{vt0}, s[{sovf}:{sovf+1}]
    ds_permute_b32 v{vb1}, v{vt0}, v{vb1}
    ds_permute_b32 v{vr1}, v{vt0}, v{vr1}
    s_bcnt1_i32_b64 s{st1}, s[{sovf}:{sovf+1}]
    s_mov_b64 s[{smask+18}:{smask+19}], 0
    s_waitcnt lgkmcnt(0)
    s_nop 1
    v_add_u32_dpp v{vha+8}, v{vb1}, v{vi12} row_newbcast:0 row_mask:0xf bank_mask:0xf
    v_sub_u32_dpp v{vt0}, v{vr1}, v{vi12} row_newbcast:0 row_mask:0xf bank_mask:0xf
    v_cmp_lt_i32 s[{smask+16}:{smask+17}], 0, v{vt0}
    s_or_b64 exec, s[{smask+16}:{smask+17}], 1
    buffer_load_dwordx3 v[{vrec+32}:{vrec+34}], v{vha+8}, s[{sWS}:{sWS+3}], 0 offen
    s_mov_b64 exec, -1
    s_cmp_gt_u32 s{st1}, 4
    s_cbranch_scc1 K2_x1
    K2_x1_ret:
    s_cmp_lg_u64 s[{smore}:{smore+1}], 0
    s_cbranch_scc1 K2_setmore
    K2_setmore_ret:
    """)
    def pass1(r):
        a(f"""
        s_movk_i32 s3, {r*4096 if r*4096 < 32768 else r*4096 - 65536}
        s_mov_b64 exec, s[{smask+2*r}:{smask+2*r+1}]
        v_lshlrev_b32_sdwa v{vha+r}, 2, v{vrec+4*r+2} dst_sel:DWORD dst_unused:UNUSED_PAD src0_sel:DWORD src1_sel:BYTE_0
        ds_add_rtn_u32 v{vrec+4*r+3}, v{vha+r}, v{vfour} offset:{L_CNT}
        ds_write_b64 v{vslot}, v[{vrec+4*r}:{vrec+4*r+1}] offset:{L_COEF + r*4096}
        v_add_u32_sdwa v{vrec+4*r+2}, s3, v{vslot} dst_sel:WORD_0 dst_unused:UNUSED_PRESERVE src0_sel:DWORD src1_sel:DWORD
        """)
    for r in range(9):
        a(f"s_waitcnt vmcnt({8-r})")
        pass1(r)
    a(f"""
    s_mov_b64 exec, -1
    s_waitcnt lgkmcnt(0)
    s_barrier
    """)
    T.stamp(a)
    a(f"ds_read_b32 v{vt0}, v{vcidx} offset:{L_CNT}")
    for i in range(NW1, 10):
        a(f"buffer_load_dwordx4 v[{vW+4*i}:{vW+4*i+3}], v{vwf}, s[{sWS}:{sWS+3}], 0 offen offset:{1024*i}" if i < 4 else
          f"s_movk_i32 s3, {1024*i}\nbuffer_load_dwordx4 v[{vW+4*i}:{vW+4*i+3}], v{vwf}, s[{sWS}:{sWS+3}], s3 offen")
    a(f"""
    s_lshl_b32 s{st0}, s{sw}, {(CAPW*4).bit_length()-1}
    s_waitcnt lgkmcnt(0)
    v_add_u32 v{vt1}, 4, v{vt0}
    v_and_b32 v{vt1}, -8, v{vt1}
    v_mov_b32 v{vt2}, v{vt1}
    """)
    dpp_scan(a, vt2, full=False)
    a(f"""
    v_lshrrev_b32 v{vsteps}, 3, v{vt1}
    v_readlane_b32 s{st1}, v{vt2}, 31
    v_sub_u32 v{vt2}, v{vt2}, v{vt1}
    v_add_u32 v{vt2}, s{st0}, v{vt2}
    v_add_u32 v{vt0}, v{vt2}, v{vt0}
    s_cmp_gt_u32 s{st1}, {(CAPW-64)*4}
    s_cbranch_scc1 K2_setslow
    s_add_u32 s{st1}, s{st1}, s{st0}
    v_mov_b32 v{vt3}, 0x{DUMMY:x}
    v_lshl_add_u32 v{vt1}, v{vlane}, 2, s{st1}
    ds_write_b32 v{vcidx}, v{vt2} offset:{L_BASE}
    ds_write_b32 v{vt0}, v{vt3} offset:{L_KEYS}
    ds_write_b32 v{vt1}, v{vt3} offset:{L_KEYS}
    K2_setslow_ret:
    v_lshrrev_b32 v{vt0}, 5, v{vlane}
    v_lshl_add_u32 v{vka}, v{vt0}, 2, s{st0}
    v_add_u32 v{vka}, {L_KEYS}, v{vka}
    v_mov_b32 v{vt0}, {L_FLAG}
    s_waitcnt lgkmcnt(0)
    s_barrier
    ds_read_b64 v[{vt1}:{vt1+1}], v{vt0}
    """ if vt1 % 2 == 0 else "ERR")
    for r in range(9):
        a(f"s_mov_b64 exec, s[{smask+2*r}:{smask+2*r+1}]\nds_read_b32 v{vha+r}, v{vha+r} offset:{L_BASE}")
    a(f"""
    s_mov_b64 exec, -1
    s_waitcnt lgkmcnt(0)
    v_readfirstlane_b32 s{st0}, v{vt1}
    v_readfirstlane_b32 s{smore}, v{vt1+1}
    s_cmp_lg_u32 s{st0}, 0
    s_cbranch_scc1 K2_goslow
    """)
    for r in range(9):
        a(f"""
        s_mov_b64 exec, s[{smask+2*r}:{smask+2*r+1}]
        v_add_u32 v{vha+r}, v{vha+r}, v{vrec+4*r+3}
        ds_write_b32 v{vha+r}, v{vrec+4*r+2} offset:{L_KEYS}
        """)
    a(f"""
    s_mov_b64 exec, -1
    s_cmp_lg_u64 s[{smask+18}:{smask+19}], 0
    s_cbranch_scc1 K2_x1b
    K2_x1b_ret:
    s_waitcnt lgkmcnt(0)
    s_barrier
    """)
    T.stamp(a)
    for i in range(U // 2):
        a(f"ds_read2_b32 v[{vC+4*i}:{vC+4*i+1}], v{vka} offset0:{4*i} offset1:{4*i+2}")
    a(f"ds_read2_b32 v[{vK}:{vK+1}], v{vka} offset0:{2*U} offset1:{2*U+2}")
    a(f"s_mov_b32 s{sidx}, 0")
    for u in range(U):
        k = vC + 4 * (u // 2) + (u & 1)
        if u % 2 == 0:
            a(f"s_waitcnt lgkmcnt({U//2 - u//2})")
        a(f"v_mad_u32_u16 v{vga}, v{k}, s{s512}, v{vlo16} op_sel:[1,0,0,0]")
        a(f"buffer_load_dwordx4 v[{vB+4*u}:{vB+4*u+3}], v{vga}, s[{sX}:{sX+3}], 0 offen")
    for u in range(0, U, 2):
        k = vC + 2 * u
        a(f"v_and_b32 v{vga}, 0xffff, v{k}\nv_and_b32 v{vca}, 0xffff, v{k+1}")
        a(f"ds_read_b64 v[{vC+2*u}:{vC+2*u+1}], v{vga}\nds_read_b64 v[{vC+2*u+2}:{vC+2*u+3}], v{vca}")
    a(f"s_waitcnt lgkmcnt(0)\ns_branch K2_P0")
    for k in range(5):
        acc = vacc + 16 * k
        for u in range(U):
            nxt = f"K2_B{k+1}_{u}" if k < 4 else f"K2_P{u}"
            kcur = vK + 2 * ((u // 2) & 1) + (u & 1)
            knxt = vK + 2 * (((u // 2) + 1) & 1)
            a(f"K2_B{k}_{u}:")
            a(f"s_sub_u32 s{scnt+k}, s{scnt+k}, 1\ns_cbranch_scc1 {nxt}")
            if u % 2 == 0:
                a(f"ds_read2_b32 v[{knxt}:{knxt+1}], v{vka} offset0:{2*(U+u+2)} offset1:{2*(U+u+3)}")
            for r in range(4):
                a(f"v_perm_b32 v{vA+r}, v{vC+2*u+1}, v{vC+2*u}, v{vsel+r}")
            if u % 2 == 0:
                a(f"s_waitcnt lgkmcnt(3)")
            a(f"v_mad_u32_u16 v{vga}, v{kcur}, s{s512}, v{vlo16} op_sel:[1,0,0,0]")
            a(f"v_and_b32 v{vca}, 0xffff, v{kcur}")
            if u == U - 1:
                a(f"v_add_u32 v{vka}, {8*U}, v{vka}")
            a(f"s_waitcnt vmcnt({U-1})")
            a(f"v_mfma_f32_32x32x16_bf16 v[{acc}:{acc+15}], v[{vA}:{vA+3}], v[{vB+4*u}:{vB+4*u+3}], v[{acc}:{acc+15}]")
            a(f"buffer_load_dwordx4 v[{vB+4*u}:{vB+4*u+3}], v{vga}, s[{sX}:{sX+3}], 0 offen")
            a(f"ds_read_b64 v[{vC+2*u}:{vC+2*u+1}], v{vca}")
        a(f"s_branch K2_B{k}_0")
    for u in range(U):
        a(f"K2_P{u}:\ns_cmp_ge_u32 s{sidx}, {8*NPH}\ns_cbranch_scc1 K2_done\ns_call_b64 s[{sret}:{sret+1}], K2_loadcnt\ns_branch K2_B0_{u}")
    a(f"K2_loadcnt:")
    for k in range(5):
        a(f"v_readlane_b32 s{scnt+k}, v{vsteps}, s{sidx}\ns_add_u32 s{sidx}, s{sidx}, {1 if k < 4 else 4}")
    a(f"s_setpc_b64 s[{sret}:{sret+1}]")

    a(f"""
    K2_x1:
    v_add_u32_dpp v{vha+9}, v{vb1}, v{vi12} row_newbcast:1 row_mask:0xf bank_mask:0xf
    v_sub_u32_dpp v{vt0}, v{vr1}, v{vi12} row_newbcast:1 row_mask:0xf bank_mask:0xf
    v_cmp_lt_i32 s[{smask+18}:{smask+19}], 0, v{vt0}
    s_mov_b64 exec, s[{smask+18}:{smask+19}]
    buffer_load_dwordx3 v[{vrec+36}:{vrec+38}], v{vha+9}, s[{sWS}:{sWS+3}], 0 offen
    s_waitcnt vmcnt(0)
    """)
    pass1(9)
    a(f"""
    s_mov_b64 exec, -1
    s_cmp_le_u32 s{st1}, 8
    s_cbranch_scc1 K2_x1_ret
    v_mov_b32 v{vt0}, {L_FLAG}
    ds_write_b32 v{vt0}, v{vfour}
    s_branch K2_x1_ret
    K2_setmore:
    v_mov_b32 v{vt0}, {L_FLAG}
    ds_write_b32 v{vt0}, v{vfour} offset:4
    s_branch K2_setmore_ret
    K2_setslow:
    v_mov_b32 v{vt0}, {L_FLAG}
    ds_write_b32 v{vt0}, v{vfour}
    s_branch K2_setslow_ret
    K2_goslow:
    s_cmp_eq_u32 s{sW12}, 12
    s_cbranch_scc1 K2_end
    s_movk_i32 s{sW12}, 12
    s_waitcnt vmcnt(0) lgkmcnt(0)
    s_barrier
    s_branch K2_batch
    K2_x1b:
    s_mov_b64 exec, s[{smask+18}:{smask+19}]
    ds_read_b32 v{vha+9}, v{vha+9} offset:{L_BASE}
    s_waitcnt lgkmcnt(0)
    v_add_u32 v{vha+9}, v{vha+9}, v{vrec+39}
    ds_write_b32 v{vha+9}, v{vrec+38} offset:{L_KEYS}
    s_mov_b64 exec, -1
    s_branch K2_x1b_ret
    K2_next:
    s_add_u32 s{sI0}, s{sI0}, s{sW12}
    s_waitcnt vmcnt(0) lgkmcnt(0)
    s_barrier
    s_branch K2_batch
    """)

    def slot(p, q):
        oo = p ^ q
        if p == q: b = p
        elif q == 0: b = 0
        elif p == 0: b = 1
        elif (p, q) in ((2, 3), (3, 1), (1, 2)): b = 2
        else: b = 3
        return oo * 4 + b
    lut = [sum(slot(2 * pi + h, q) << (4 * (h * 4 + q)) for h in range(2) for q in range(4)) for pi in range(2)]
    V.n = al
    vwa = V.get(4)
    vra = V.get(4)
    vP = V.get(8, 4)
    vD = V.get(16, 4)
    assert V.hi <= 256
    vF = vacc
    a(f"""
    K2_done:
    s_cmp_lg_u32 s{smore}, 0
    s_cbranch_scc1 K2_next
    s_waitcnt vmcnt(0) lgkmcnt(0)
    """)
    T.stamp(a)
    a(f"""
    v_lshrrev_b32 v{vt0}, 3, v{vlane}
    v_lshlrev_b32 v{vt0}, 2, v{vt0}
    v_and_b32 v{vt1}, 7, v{vlane}
    s_lshl_b32 s3, s{sw}, 11
    s_add_u32 s3, s3, {L_T}
    """)
    for pi in range(2):
        a(f"""
        s_mov_b32 s{st0}, 0x{lut[pi]:x}
        v_bfe_u32 v{vt2}, s{st0}, v{vt0}, 4
        v_lshl_add_u32 v{vt2}, v{vt2}, 3, v{vt1}       ; chunk
        v_xor_b32 v{vt2}, s{sw}, v{vt2}
        v_lshl_add_u32 v{vwa+pi}, v{vt2}, 4, s3
        v_xor_b32 v{vwa+2+pi}, 128, v{vwa+pi}
        """)
    for k in range(5):
        acc = vacc + 16 * k
        if k == 4:
            a(f"v_add_u32 v{vwa}, 0x10000, v{vwa}\nv_add_u32 v{vwa+1}, 0x10000, v{vwa+1}")
        for pi in range(2):
            for i in range(4):
                a(f"v_cvt_pk_bf16_f32 v{vP+4*pi+i}, v{acc+8*pi+2*i}, v{acc+8*pi+2*i+1}")
            a(f"ds_write_b128 v{vwa+2*(k&1)+pi}, v[{vP+4*pi}:{vP+4*pi+3}] offset:{(k*16384) & 0xffff}")
    a(f"""
    v_and_b32 v{vt0}, 15, v{vlane}
    v_lshrrev_b32 v{vt1}, 4, v{vlane}
    v_xor_b32 v{vt2}, v{vt0}, v{vt1}
    s_lshr_b32 s{st0}, s{sw}, 2
    s_lshl_b32 s3, s{st0}, 15
    s_add_u32 s3, s3, {L_T}
    v_lshlrev_b32 v{vt2}, 4, v{vt2}
    v_lshl_add_u32 v{vt2}, v{vt0}, 11, v{vt2}
    v_add_u32 v{vra}, s3, v{vt2}
    v_xor_b32 v{vra+1}, 64, v{vra}
    v_xor_b32 v{vra+2}, 128, v{vra}
    v_xor_b32 v{vra+3}, 192, v{vra}
    """)
    for i in range(8):
        a(f"v_xor_b32 v{vW+40+i}, 0x80008000, v{vW+32+i}")
    a(f"""
    s_mul_i32 s3, s{st0}, {16*OSTR}
    s_and_b32 s{st1}, s{sw}, 3
    s_lshl_b32 s{st1}, s{st1}, 5
    s_add_u32 s3, s3, s{st1}
    v_mul_u32_u24 v{vt3}, {OSTR}, v{vt0}
    v_lshl_add_u32 v{vt3}, v{vt1}, 3, v{vt3}
    v_add_u32 v{vt3}, s3, v{vt3}
    s_waitcnt lgkmcnt(0)
    s_barrier
    """)
    T.stamp(a)
    a("K2_tile:")
    frs = [(oo, b, ks) for b in range(4) for ks in range(2) for oo in range(4)]
    NB = 12
    def rd(i):
        oo, b, ks = frs[i]
        chunk = (oo * 4 + b) * 8 + ks * 4
        a(f"ds_read_b128 v[{vF+4*(i%16)}:{vF+4*(i%16)+3}], v{vra+((chunk>>2)&3)} offset:{(chunk>>4)*256}")
    for i in range(NB): rd(i)
    for i in range(32):
        oo, b, ks = frs[i]
        wb = (0 if b == 0 else 1) if oo == 0 else 2 + b
        wreg = vW + 8 * wb + 4 * ks
        a(f"s_waitcnt lgkmcnt({min(NB-1, 31-i)})")
        c = "0" if i < 4 else f"v[{vD+4*oo}:{vD+4*oo+3}]"
        a(f"v_mfma_f32_16x16x32_bf16 v[{vD+4*oo}:{vD+4*oo+3}], v[{wreg}:{wreg+3}], v[{vF+4*(i%16)}:{vF+4*(i%16)+3}], {c}")
        if i + NB < 32: rd(i + NB)
    a("s_nop 7")
    for r in range(4):
        a(f"v_mul_f32 v{vP+r}, 0xbfb8aa3b, v{vD+r}")
    for r in range(4):
        a(f"v_exp_f32 v{vP+r}, v{vP+r}")
    for r in range(4):
        a(f"v_add_f32 v{vP+r}, 1.0, v{vP+r}")
    for r in range(4):
        a(f"v_rcp_f32 v{vP+r}, v{vP+r}")
    a(f"v_cvt_pk_bf16_f32 v{vP+4}, v{vD}, v{vD+1}\nv_cvt_pk_bf16_f32 v{vP+5}, v{vD+2}, v{vD+3}")
    a(f"ds_write_b64 v{vt3}, v[{vP+4}:{vP+5}] offset:{L_OUT}")
    for oo in range(1, 4):
        for r in range(4):
            a(f"v_mul_f32 v{vD+4*oo+r}, v{vP+r}, v{vD+4*oo+r}")
        a(f"v_cvt_pk_bf16_f32 v{vD+4*oo}, v{vD+4*oo}, v{vD+4*oo+1}\nv_cvt_pk_bf16_f32 v{vD+4*oo+1}, v{vD+4*oo+2}, v{vD+4*oo+3}")
        a(f"ds_write_b64 v{vt3}, v[{vD+4*oo}:{vD+4*oo+1}] offset:{L_OUT + 128*oo}")
    a(f"""
    s_cmp_lg_u32 s{st0}, 0
    s_cbranch_scc1 K2_tiles_done
    s_mov_b32 s{st0}, 2
    v_add_u32 v{vra}, 0x10000, v{vra}
    v_add_u32 v{vra+1}, 0x10000, v{vra+1}
    v_add_u32 v{vra+2}, 0x10000, v{vra+2}
    v_add_u32 v{vra+3}, 0x10000, v{vra+3}
    v_add_u32 v{vt3}, {32*OSTR}, v{vt3}
    s_waitcnt lgkmcnt(0)
    s_branch K2_tile
    K2_tiles_done:
    v_lshrrev_b32 v{vt0}, 5, v0                    ; row 0..15
    v_mul_u32_u24 v{vt1}, {OSTR}, v{vt0}
    v_add_u32 v{vt1}, v{vt1}, v{vlo16}
    s_lshl_b32 s3, s{sb}, 9
    v_lshl_add_u32 v{vt2}, v{vt0}, 17, v{vlo16}
    v_add_u32 v{vt2}, s3, v{vt2}
    s_mov_b32 s{st0}, {16<<17}
    v_add_u32 v{vt3}, {32<<17}, v{vt2}
    s_waitcnt lgkmcnt(0)
    s_barrier
    """)
    T.stamp(a)
    a(f"""
    ds_read_b128 v[{vF}:{vF+3}], v{vt1} offset:{L_OUT}
    ds_read_b128 v[{vF+4}:{vF+7}], v{vt1} offset:{L_OUT + 16*OSTR}
    ds_read_b128 v[{vF+8}:{vF+11}], v{vt1} offset:{L_OUT + 32*OSTR}
    s_cmp_ge_u32 s{sw}, 4
    s_waitcnt lgkmcnt(2)
    buffer_store_dwordx4 v[{vF}:{vF+3}], v{vt2}, s[{sO}:{sO+3}], 0 offen {o.k2st}
    s_waitcnt lgkmcnt(1)
    buffer_store_dwordx4 v[{vF+4}:{vF+7}], v{vt2}, s[{sO}:{sO+3}], s{st0} offen {o.k2st}
    s_cbranch_scc1 K2_fin
    s_waitcnt lgkmcnt(0)
    buffer_store_dwordx4 v[{vF+8}:{vF+11}], v{vt3}, s[{sO}:{sO+3}], 0 offen {o.k2st}
    K2_fin:
    """)
    if o.diag:
        T.stamp(a)
        a("s_waitcnt vmcnt(0)")
        T.stamp(a)
        T.dump(a, sWS, vt0, "k2", wave_s=sw)
    a("K2_end:\ns_endpgm")
    return a.text(), nv, 96, lds

def desc(name, nv, ns):
    nv8 = (nv + 7) // 8 * 8
    return f""".p2align 6
.amdhsa_kernel {name}
  .amdhsa_next_free_vgpr {nv8}
  .amdhsa_next_free_sgpr {ns}
  .amdhsa_accum_offset {nv8}
  .amdhsa_group_segment_fixed_size 0
  .amdhsa_kernarg_size 96
  .amdhsa_user_sgpr_count 2
  .amdhsa_user_sgpr_kernarg_segment_ptr 1
  .amdhsa_system_sgpr_workgroup_id_x 1
.end_amdhsa_kernel
"""

def main():
    ap = argparse.ArgumentParser()
    ap.add_argument("-o", default=f"cdna_kernels/{NAME}.s")
    ap.add_argument("--nph", type=int, default=4)
    ap.add_argument("--u", type=int, default=8)
    ap.add_argument("--k1ld", default="nt")
    ap.add_argument("--k1st", default="sc1")
    ap.add_argument("--k2st", default="")
    ap.add_argument("--k1pf", type=int, default=0)
    ap.add_argument("--nw1", type=int, default=5)
    ap.add_argument("--diag", action="store_true")
    o = ap.parse_args()
    k1, nv1, ns1, lds1 = gen_k1(o)
    k2, nv2, ns2, lds2 = gen_k2(o)
    hdr = open(f"cdna_kernels/{NAME}.s.ref").read().split("; Override launch")[0]
    k1n = "bin_edges_kernel"; k2n = f"{NAME}_kernel"
    s = hdr
    s += f"; @launch kernel={k1n} grid=({NPROD+4},1,1) block=(704,1,1) lds={lds1}\n"
    s += f"; @launch kernel={k2n} grid=(256,1,1) block=(512,1,1) lds={lds2}\n"
    s += '.amdgcn_target "amdgcn-amd-amdhsa--gfx950"\n.text\n'
    for n, t in ((k1n, k1), (k2n, k2)):
        s += f".globl {n}\n.p2align 8\n.type {n},@function\n{n}:\n{t}"
    s += '.section .rodata,"a"\n' + desc(k1n, nv1, ns1) + desc(k2n, nv2, ns2)
    open(o.o, "w").write(s)
    print(f"wrote {o.o}: k1 vgpr {nv1} lds {lds1}; k2 vgpr {nv2} lds {lds2}")

if __name__ == "__main__":
    main()
```

```python
import sys
src, dst, slot, idx, op, nwg, nwv = sys.argv[1], sys.argv[2], int(sys.argv[3]), int(sys.argv[4]), sys.argv[5], int(sys.argv[6]), int(sys.argv[7])
WS_TS = 0x1000000
s = open(src).read()
def red(v, ins):
    t = ""
    for d in ("row_shr:1 row_mask:0xf", "row_shr:2 row_mask:0xf", "row_shr:4 row_mask:0xf", "row_shr:8 row_mask:0xf", "row_bcast:15 row_mask:0xa", "row_bcast:31 row_mask:0xc"):
        t += f"    s_nop 1\n    {ins}_dpp v{v}, v{v}, v{v} {d} bank_mask:0xf\n"
    return t
b = f"""
    s_cmp_ge_u32 s2, 1
    s_cbranch_scc1 R_end
    s_load_dwordx2 s[4:5], s[0:1], 88
    v_mov_b32 v10, -1
    s_waitcnt lgkmcnt(0)
"""
for c in range(4):
    b += f"""    v_add_u32 v1, {64*c}, v0
    v_min_u32 v1, 249, v1
    v_lshlrev_b32 v1, 10, v1
    v_add_u32 v1, {WS_TS + (0x40000 if 'fused=1' in s else 0)}, v1
    global_load_dword v2, v1, s[4:5]
    s_waitcnt vmcnt(0)
    v_min_u32 v10, v10, v2
"""
b += red(10, "v_min_u32") + "    s_nop 1\n    v_readlane_b32 s10, v10, 63\n    s_nop 3\n"
ins = {"max": "v_max_u32", "min": "v_min_u32", "avg": "v_add_u32", "zero": "v_max_u32"}[op]
b += f"    v_mov_b32 v11, {-1 if op == 'min' else 0}\n"
for c in range(4):
    b += f"""    v_add_u32 v1, {64*c}, v0
    v_min_u32 v1, {nwg-1}, v1
    v_lshlrev_b32 v1, 10, v1
    v_add_u32 v1, {WS_TS + slot*0x40000 + 4*idx}, v1
"""
    for w in range(nwv):
        b += f"    global_load_dword v{20+w}, v1, s[4:5] offset:{64*w}\n"
    b += "    s_waitcnt vmcnt(0)\n"
    for w in range(nwv):
        b += f"    v_subrev_u32 v{20+w}, s10, v{20+w}\n    {ins} v11, v11, v{20+w}\n"
b += red(11, ins) + "    s_nop 1\n    v_readlane_b32 s11, v11, 63\n    s_nop 3\n"
if op == "avg":
    b += f"    s_mul_hi_u32 s11, s11, {(1<<32)//(256*nwv)+1}\n"
if op == "zero":
    b += "    s_mov_b32 s11, 0\n"
b += f"""    s_mul_i32 s11, s11, 10
    s_min_u32 s11, s11, 40000
    s_add_u32 s11, s11, 6000
R_spin:
    s_memrealtime s[12:13]
    s_waitcnt lgkmcnt(0)
    s_sub_u32 s14, s12, s10
    s_cmp_lt_u32 s14, s11
    s_cbranch_scc1 R_spin
R_end:
    s_endpgm
"""
s = s.replace("; @launch grid=", "; @launch kernel=standalone__tensor_product_equiv_equiformer__graph_kernel grid=")
lines = s.split("\n")
last = max(i for i, l in enumerate(lines) if l.startswith("; @launch kernel="))
lines.insert(last + 1, "; @launch kernel=report_kernel grid=(1,1,1) block=(64,1,1) lds=0")
s = "\n".join(lines)
s = s.replace('.section .rodata,"a"\n', '.globl report_kernel\n.p2align 8\n.type report_kernel,@function\nreport_kernel:\n' + b + '.section .rodata,"a"\n.p2align 6\n.amdhsa_kernel report_kernel\n  .amdhsa_next_free_vgpr 40\n  .amdhsa_next_free_sgpr 32\n  .amdhsa_accum_offset 40\n  .amdhsa_group_segment_fixed_size 0\n  .amdhsa_kernarg_size 96\n  .amdhsa_user_sgpr_count 2\n  .amdhsa_user_sgpr_kernarg_segment_ptr 1\n  .amdhsa_system_sgpr_workgroup_id_x 1\n.end_amdhsa_kernel\n')
open(dst, "w").write(s)
```

```python
import sys, argparse

NAME = "standalone__tensor_product_equiv_equiformer__graph"

class Asm:
    def __init__(self):
        self.lines = []
    def __call__(self, s):
        for l in s.strip("\n").split("\n"):
            l = l.strip()
            if not l:
                continue
            if l.endswith(":") or l.startswith("."):
                self.lines.append(l)
            else:
                self.lines.append("    " + l)
    def text(self):
        return "\n".join(self.lines) + "\n"

class Regs:
    def __init__(self, prefix, start=0):
        self.p = prefix; self.n = start; self.hi = start
    def get(self, cnt=1, align=1):
        self.n = (self.n + align - 1) // align * align
        r = self.n; self.n += cnt; self.hi = max(self.hi, self.n)
        return r

def vr(a, n=1):
    return f"v{a}" if n == 1 else f"v[{a}:{a+n-1}]"
def sr(a, n=1):
    return f"s{a}" if n == 1 else f"s[{a}:{a+n-1}]"

NPROD = 250
CHUNK = 2560
RECB = CHUNK * 12
WS_REC = 0
WS_WF = NPROD * RECB
WS_OFF = WS_WF + 40 * 1024
WS_END = WS_OFF + NPROD * 1024
WS_TS = 0x1000000

def dpp_scan(a, v, full=True):
    for sh in (1, 2, 4, 8):
        a(f"s_nop 1\nv_add_u32_dpp v{v}, v{v}, v{v} row_shr:{sh} row_mask:0xf bank_mask:0xf")
    a(f"s_nop 1\nv_add_u32_dpp v{v}, v{v}, v{v} row_bcast:15 row_mask:0xa bank_mask:0xf")
    if full:
        a(f"s_nop 1\nv_add_u32_dpp v{v}, v{v}, v{v} row_bcast:31 row_mask:0xc bank_mask:0xf")

class Stamps:
    def __init__(self, on, base_s, slot):
        self.on = on; self.base = base_s; self.n = 0; self.slot = slot
    def stamp(self, a):
        if not self.on: return
        a(f"s_memrealtime s[{self.base+2*self.n}:{self.base+2*self.n+1}]")
        self.n += 1
    def clk(self, a, i):
        if not self.on: return
        a(f"s_memtime s[{self.base+24+2*i}:{self.base+25+2*i}]")
        self.hasclk = True
    def dump(self, a, ws_pair, vt, tag, wave_s=None):
        if not self.on: return
        a(f"""s_waitcnt lgkmcnt(0)
        s_mov_b64 exec, 1
        s_lshl_b32 s3, s2, 10
        s_add_u32 s3, s3, {WS_TS + self.slot*0x40000}""")
        if wave_s is not None:
            a(f"s_lshl_b32 s{wave_s}, s{wave_s}, 6\ns_add_u32 s3, s3, s{wave_s}")
        a(f"v_mov_b32 v{vt}, s3")
        for i in list(range(self.n)) + ([12, 13] if getattr(self, 'hasclk', False) else []):
            a(f"v_mov_b32 v{vt+1}, s{self.base+2*i}\nglobal_store_dword v{vt}, v{vt+1}, s[{ws_pair}:{ws_pair+1}] offset:{4*i}")

def gen_k1(o):
    a = Asm()
    NPH = o.nph
    PHC = {1: 0, 2: 3355, 3: 5033, 4: 6711}[NPH]
    HIST = RECB
    BASE = RECB + 1024
    ld = o.k1ld; st = o.k1st
    T = Stamps(o.diag, 40, 0)
    T.stamp(a)
    a(f"""
    s_cmp_ge_u32 s2, {NPROD}
    s_cbranch_scc1 K1_prep
    s_load_dwordx8 s[4:11], s[0:1], 8
    s_load_dwordx2 s[12:13], s[0:1], 88      ; ws
    v_lshrrev_b32 v1, 6, v0
    s_mul_i32 s3, s2, {CHUNK*4}
    v_readfirstlane_b32 s14, v1
    v_lshl_add_u32 v2, v0, 4, s3
    s_cmp_ge_u32 s14, 10
    s_cbranch_scc1 K1_helper
    v_lshrrev_b32 v3, 1, v2
    v_add_u32 v4, v2, v3
    v_mov_b32 v5, 12
    s_waitcnt lgkmcnt(0)
    global_load_dwordx4 v[8:11], v2, s[10:11] {ld}       ; dst
    global_load_dwordx4 v[12:15], v2, s[8:9] {ld}        ; src
    global_load_dwordx2 v[16:17], v3, s[6:7] {ld}        ; e_attr
    global_load_dwordx3 v[18:20], v4, s[4:5] {ld}        ; rhat e0,e1
    global_load_dwordx3 v[22:24], v4, s[4:5] offset:12 {ld}  ; rhat e2,e3
    s_mov_b32 s15, 0xffff0000
    s_movk_i32 s16, {PHC}
    s_barrier
    s_waitcnt vmcnt(4)
    """)
    T.stamp(a)
    for i in range(4):
        a(f"v_lshlrev_b32_sdwa v{26+i}, 2, v{8+i} dst_sel:DWORD dst_unused:UNUSED_PAD src0_sel:DWORD src1_sel:BYTE_0")
        a(f"ds_add_rtn_u32 v{30+i}, v{26+i}, v5 offset:{HIST}")
    a("s_waitcnt lgkmcnt(0)\ns_barrier\ns_waitcnt vmcnt(3)")
    for i in range(4):
        k = 38 + 4 * i
        a(f"v_mul_u32_u24 v{k}, s16, v{12+i}")
        a(f"v_lshlrev_b32_sdwa v{k}, 6, v{k} dst_sel:DWORD dst_unused:UNUSED_PAD src0_sel:DWORD src1_sel:BYTE_3")
        a(f"v_or_b32_sdwa v{k}, v{k}, v{8+i} dst_sel:DWORD dst_unused:UNUSED_PAD src0_sel:DWORD src1_sel:BYTE_1")
        a(f"v_lshl_or_b32 v{k}, v{12+i}, 16, v{k}")
    a("s_waitcnt vmcnt(1)")
    def unpack(dst, src, hi):
        a(f"v_and_b32 v{dst}, s15, v{src}" if hi else f"v_lshlrev_b32 v{dst}, 16, v{src}")
    for i in range(4):
        if i == 2:
            a("s_waitcnt vmcnt(0)")
            T.stamp(a)
        R = 18 if i < 2 else 22
        c = 36 + 4 * i
        unpack(8, 16 + i // 2, i & 1)
        for j in range(3):
            el = 3 * (i & 1) + j
            unpack(9 + j, R + el // 2, el & 1)
        for j in range(3):
            a(f"v_mul_f32 v{9+j}, v8, v{9+j}")
        a(f"v_cvt_pk_bf16_f32 v{c}, v8, v9")
        a(f"v_cvt_pk_bf16_f32 v{c+1}, v10, v11")
    a("s_barrier")
    T.stamp(a)
    for i in range(4):
        a(f"ds_read_b32 v{26+i}, v{26+i} offset:{BASE}")
    a(f"v_lshlrev_b32 v6, 4, v0\ns_mul_i32 s3, s2, {RECB}\nv_add_u32 v7, s3, v6")
    for i in range(4):
        a(f"s_waitcnt lgkmcnt({3 + i})")
        a(f"v_add_u32 v{26+i}, v{26+i}, v{30+i}")
        a(f"ds_write2_b32 v{26+i}, v{36+4*i}, v{37+4*i} offset0:0 offset1:1")
        a(f"ds_write_b32 v{26+i}, v{38+4*i} offset:8")
    a(f"""
    v_add_u32 v20, 10240, v7
    v_add_u32 v21, 20480, v7
    s_waitcnt lgkmcnt(0)
    s_barrier
    """)
    T.stamp(a)
    a(f"""
    ds_read_b128 v[8:11], v6
    ds_read_b128 v[12:15], v6 offset:10240
    ds_read_b128 v[16:19], v6 offset:20480
    s_waitcnt lgkmcnt(2)
    global_store_dwordx4 v7, v[8:11], s[12:13] {st}
    s_waitcnt lgkmcnt(1)
    global_store_dwordx4 v20, v[12:15], s[12:13] {st}
    s_waitcnt lgkmcnt(0)
    global_store_dwordx4 v21, v[16:19], s[12:13] {st}
    """)
    if o.diag:
        T.stamp(a)
        a("s_waitcnt vmcnt(0)")
        T.stamp(a)
        T.dump(a, 12, 30, "k1", wave_s=14)
    a("s_endpgm")

    a(f"""
    K1_helper:
    v_and_b32 v1, 63, v0
    v_lshlrev_b32 v2, 4, v1
    v_mov_b32 v4, 0
    v_mov_b32 v5, 0
    v_mov_b32 v6, 0
    v_mov_b32 v7, 0
    ds_write_b128 v2, v[4:7] offset:{HIST}
    s_lshl_b32 s3, s2, 10
    s_add_u32 s3, s3, {WS_OFF}
    v_add_u32 v3, s3, v2
    s_waitcnt lgkmcnt(0)
    """)
    npf = o.k1pf
    if npf:
        a(f"""
        s_load_dwordx2 s[20:21], s[0:1], 0
        s_lshr_b32 s17, s2, 3
        s_mul_i32 s17, s17, {npf*8192}
        v_lshlrev_b32 v20, 7, v1
        v_add_u32 v20, s17, v20
        s_mov_b32 s22, 5120000
        s_mov_b32 s23, 0x20000
        s_waitcnt lgkmcnt(0)
        """)
    if o.mall:
        a(f"""
        s_load_dwordx2 s[20:21], s[0:1], 0
        s_mul_i32 s17, s2, 20480
        v_lshlrev_b32 v20, {o.mallsh}, v1
        v_add_u32 v20, s17, v20
        s_add_u32 s22, s17, 20480
        s_mov_b32 s23, 0x20000
        s_waitcnt lgkmcnt(0)
        """)
    def mall():
        for i in range(-(-20480 // (64 << o.mallsh))):
            a(f"buffer_load_dword v21, v20, s[20:23], 0 offen\nv_add_u32 v20, {64 << o.mallsh}, v20")
    a("s_barrier")
    if o.mall == 1: mall()
    if npf:
        for i in range(npf):
            a(f"buffer_load_dword v21, v20, s[20:23], 0 offen\nv_add_u32 v20, 8192, v20")
    a("s_barrier")
    if o.mall == 2: mall()
    a(f"""
    ds_read_b128 v[4:7], v2 offset:{HIST}
    s_waitcnt lgkmcnt(0)
    v_add_u32 v9, v4, v5
    v_add_u32 v10, v9, v6
    v_add_u32 v11, v10, v7
    v_mov_b32 v12, v11
    """)
    dpp_scan(a, 12)
    a(f"""
    v_sub_u32 v16, v12, v11
    v_add_u32 v17, v16, v4
    v_add_u32 v18, v16, v9
    v_add_u32 v19, v16, v10
    ds_write_b128 v2, v[16:19] offset:{BASE}
    v_lshl_or_b32 v4, v4, 16, v16
    v_lshl_or_b32 v5, v5, 16, v17
    v_lshl_or_b32 v6, v6, 16, v18
    v_lshl_or_b32 v7, v7, 16, v19
    s_waitcnt lgkmcnt(0)
    s_barrier
    global_store_dwordx4 v3, v[4:7], s[12:13] {st}
    s_barrier
    s_endpgm
    """)

    a(f"""
    K1_prep:
    s_cmp_ge_u32 s2, {NPROD+4}
    s_cbranch_scc1 K1_end
    s_load_dwordx4 s[4:7], s[0:1], 40
    s_load_dwordx2 s[8:9], s[0:1], 56        ; w_si1
    s_load_dwordx2 s[12:13], s[0:1], 88      ; ws
    v_lshrrev_b32 v1, 6, v0
    s_sub_u32 s15, s2, {NPROD}               ; ct
    v_readfirstlane_b32 s14, v1
    v_and_b32 v1, 63, v0
    s_cmp_ge_u32 s14, 10
    s_cbranch_scc1 K1_end
    v_lshrrev_b32 v2, 4, v1                  ; g
    v_and_b32 v3, 15, v1                     ; m
    s_lshl_b32 s16, s14, 6
    v_lshl_add_u32 v4, v2, 4, s16            ; + 16*g
    s_cmp_lt_u32 s14, 4
    s_cselect_b32 s17, 0, 4
    s_sub_u32 s17, s14, s17
    s_lshl_b32 s17, s17, 12                  ; *32 rows*128 B
    s_lshl_b32 s18, s15, 5
    s_add_u32 s17, s17, s18
    v_lshlrev_b32 v5, 10, v2                 ; g*8 rows*128 B
    v_lshl_add_u32 v5, v3, 1, v5
    v_add_u32 v5, s17, v5
    s_mul_i32 s18, s15, 10
    s_add_u32 s18, s18, s14
    s_lshl_b32 s18, s18, 10
    s_add_u32 s18, s18, {WS_WF}
    v_lshl_add_u32 v6, v1, 4, s18
    s_waitcnt lgkmcnt(0)
    s_cmp_lt_u32 s14, 4
    s_cselect_b32 s10, s6, s8
    s_cselect_b32 s11, s7, s9
    global_load_dwordx4 v[8:11], v4, s[4:5]
    """)
    for i in range(8):
        a(f"global_load_ushort v{12+i}, v5, s[10:11] offset:{128*i}")
    a("s_waitcnt vmcnt(0)")
    for i in range(8):
        a(f"v_lshlrev_b32 v{12+i}, 16, v{12+i}")
        a(f"v_and_b32 v20, 0xffff0000, v{8+i//2}" if i & 1 else f"v_lshlrev_b32 v20, 16, v{8+i//2}")
        a(f"v_mul_f32 v{12+i}, v20, v{12+i}")
    for i in range(4):
        a(f"v_cvt_pk_bf16_f32 v{24+i}, v{12+2*i}, v{13+2*i}")
    a(f"""
    global_store_dwordx4 v6, v[24:27], s[12:13] {st}
    K1_end:
    s_endpgm
    """)
    return a.text(), 56, 64, RECB + 2048

def gen_k2(o):
    a = Asm()
    U = o.u
    NPH = o.nph
    NR = 10
    CAPW = 512
    L_COEF = 0
    L_ZERO = NR * 4096
    L_CNT = L_ZERO + 16
    L_FLAG = L_CNT + 1024
    L_BASE = L_FLAG + 16
    L_KEYS = L_BASE + 1024
    L_T = (L_KEYS + 8 * CAPW * 4 + 255) // 256 * 256
    L_END = L_T + 48 * 2048
    L_OUT = 0
    OSTR = 528
    lds = L_END
    assert lds <= 163840, lds
    DUMMY = 0xFFFF0000 | L_ZERO

    V = Regs("v", 1)
    vt0 = V.get(); vt1 = V.get(); vt2 = V.get(); vt3 = V.get(); vlane = V.get()
    vlo16 = V.get()
    vi12 = V.get()
    vslot = V.get()
    vfour = V.get()
    voffs = V.get()
    vpb = V.get()
    vbase = V.get(); vrem = V.get(); vb1 = V.get(); vr1 = V.get()
    vsteps = V.get(); vka = V.get(); vwf = V.get(); vcidx = V.get()
    vsel = V.get(4)
    vacc = V.get(80, 4)
    vW = V.get(48, 4)
    al = V.get(0, 4)
    vB = V.get(4 * U, 4)
    vC = V.get(2 * U, 2)
    vA = V.get(4, 4)
    vK = V.get(4, 2)
    vga = V.get(); vca = V.get()
    end_main = V.n
    V.n = al
    vrec = V.get(4 * NR, 4)
    vha = V.get(NR)
    V.n = max(V.n, end_main)
    nv = V.hi
    assert nv <= 256, nv

    sX = 4
    sWS = 8
    sO = 12
    sb = 16; sw = 17; sI0 = 18; sW12 = 19; sidx = 20; s512 = 21; st0 = 22; st1 = 23
    scnt = 24
    sret = 30
    smask = 32
    sovf = 52
    smore = 54
    stog = 56; syoung = 57
    T = Stamps(o.diag, 60, 1)
    T.stamp(a)
    a(f"""
    s_cmp_ge_u32 s2, 256
    s_cbranch_scc1 K2_end
    s_load_dwordx2 s[{sWS}:{sWS+1}], s[0:1], 88
    s_load_dwordx2 s[{sX}:{sX+1}], s[0:1], 0
    s_load_dwordx2 s[{sO}:{sO+1}], s[0:1], 72
    v_lshrrev_b32 v{vt0}, 6, v0
    v_and_b32 v{vlane}, 63, v0
    v_readfirstlane_b32 s{sw}, v{vt0}
    s_and_b32 s{sb}, s2, 7
    s_lshl_b32 s{sb}, s{sb}, 5
    s_lshr_b32 s3, s2, 3
    s_or_b32 s{sb}, s{sb}, s3                      ; bucket
    v_lshrrev_b32 v{vt0}, 4, v0                    ; 4*w + g
    v_and_b32 v{vt1}, 7, v0
    v_lshl_add_u32 v{vt0}, v{vt0}, 3, v{vt1}       ; p = 32w + 8g + (lane&7)
    s_lshl_b32 s3, s{sb}, 2
    s_add_u32 s3, s3, {WS_OFF}
    v_lshl_add_u32 v{vt1}, v{vt0}, 10, s3
    s_mov_b32 s{sWS+2}, {WS_END}
    s_mov_b32 s{sWS+3}, 0x20000
    s_mov_b32 s{sX+2}, 5120000
    s_mov_b32 s{sX+3}, 0x20000
    s_mov_b32 s{sO+2}, 5120000
    s_mov_b32 s{sO+3}, 0x20000
    s_waitcnt lgkmcnt(0)
    buffer_load_dword v{voffs}, v{vt1}, s[{sWS}:{sWS+3}], 0 offen
    v_mul_u32_u24 v{vpb}, {RECB}, v{vt0}
    v_and_b32 v{vt1}, 15, v0
    v_mul_u32_u24 v{vi12}, 12, v{vt1}
    v_lshlrev_b32 v{vslot}, 3, v0
    v_mov_b32 v{vfour}, 4
    v_and_b32 v{vt1}, 31, v0
    v_lshlrev_b32 v{vlo16}, 4, v{vt1}
    s_movk_i32 s{s512}, 512
    s_mov_b32 s{sI0}, 0
    s_movk_i32 s{sW12}, 384
    s_and_b32 s3, s{sw}, 3
    s_mul_i32 s3, s3, 10240
    s_add_u32 s3, s3, {WS_WF}
    v_lshl_add_u32 v{vwf}, v{vlane}, 4, s3
    v_lshrrev_b32 v{vt0}, 3, v{vt1}
    v_lshlrev_b32 v{vt0}, 6, v{vt0}
    v_and_b32 v{vt2}, 7, v0
    v_lshl_add_u32 v{vt0}, v{vt2}, 3, v{vt0}
    v_add_lshl_u32 v{vcidx}, v{vt0}, s{sw}, 2
    v_lshrrev_b32 v{vt0}, 4, v{vt1}
    v_bfe_u32 v{vt2}, v{vt1}, 2, 1
    v_lshl_add_u32 v{vt0}, v{vt0}, 1, v{vt2}       ; p
    v_mul_u32_u24 v{vt0}, 0x202, v{vt0}
    v_add_u32 v{vt0}, 0x0c0c0100, v{vt0}
    v_and_b32 v{vt2}, 1, v0
    v_lshlrev_b32 v{vt2}, 4, v{vt2}
    v_alignbit_b32 v{vt0}, v{vt0}, v{vt0}, v{vt2}
    v_bfe_u32 v{vt2}, v{vt1}, 3, 1
    v_bfe_u32 v{vt3}, v{vt1}, 1, 1
    v_lshl_add_u32 v{vt2}, v{vt2}, 1, v{vt3}       ; j>>1
    v_mov_b32 v{vt3}, 0x0c0c0c0c
    """)
    for r in range(4):
        a(f"v_cmp_eq_u32 vcc, {r}, v{vt2}\ns_nop 1\nv_cndmask_b32 v{vsel+r}, v{vt3}, v{vt0}, vcc")
    for i in range(80):
        a(f"v_mov_b32 v{vacc+i}, 0")
    a(f"""
    K2_batch:
    v_lshlrev_b32 v{vt0}, 2, v0
    v_mov_b32 v{vt1}, 0
    v_cmp_gt_u32 vcc, {(L_BASE - L_ZERO)//4}, v0
    s_mov_b64 exec, vcc
    ds_write_b32 v{vt0}, v{vt1} offset:{L_ZERO}
    s_mov_b64 exec, -1
    s_waitcnt lgkmcnt(0)
    s_barrier
    """)
    NW1 = o.nw1
    for i in range(NW1):
        a(f"buffer_load_dwordx4 v[{vW+4*i}:{vW+4*i+3}], v{vwf}, s[{sWS}:{sWS+3}], 0 offen offset:{1024*i}" if i < 4 else
          f"s_movk_i32 s3, {1024*i}\nbuffer_load_dwordx4 v[{vW+4*i}:{vW+4*i+3}], v{vwf}, s[{sWS}:{sWS+3}], s3 offen")
    a(f"s_waitcnt vmcnt({NW1})")
    T.stamp(a)
    a(f"""
    v_and_b32 v{vt0}, 0xffff, v{voffs}
    v_lshrrev_b32 v{vt1}, 16, v{voffs}
    v_add3_u32 v{vbase}, v{vpb}, v{vt0}, s{sI0}
    v_subrev_u32 v{vt1}, s{sI0}, v{vt1}
    v_min_i32 v{vrem}, s{sW12}, v{vt1}
    v_cmp_lt_i32 s[{smore}:{smore+1}], s{sW12}, v{vt1}
    """)
    for r in range(8):
        a(f"""
        v_add_u32_dpp v{vha+r}, v{vbase}, v{vi12} row_newbcast:{r} row_mask:0xf bank_mask:0xf
        v_sub_u32_dpp v{vt0}, v{vrem}, v{vi12} row_newbcast:{r} row_mask:0xf bank_mask:0xf
        v_cmp_lt_i32 s[{smask+2*r}:{smask+2*r+1}], 0, v{vt0}
        s_or_b64 exec, s[{smask+2*r}:{smask+2*r+1}], 1
        buffer_load_dwordx3 v[{vrec+4*r}:{vrec+4*r+2}], v{vha+r}, s[{sWS}:{sWS+3}], 0 offen
        s_mov_b64 exec, -1
        """)
    a(f"""
    v_subrev_u32 v{vr1}, 192, v{vrem}
    v_add_u32 v{vb1}, 192, v{vbase}
    v_cmp_lt_i32 vcc, 0, v{vr1}
    s_mov_b32 s{st0}, 0x00ff00ff
    s_and_b32 s{sovf}, vcc_lo, s{st0}
    s_and_b32 s{sovf+1}, vcc_hi, s{st0}
    v_mbcnt_lo_u32_b32 v{vt0}, s{sovf}, 0
    v_mbcnt_hi_u32_b32 v{vt0}, s{sovf+1}, v{vt0}
    v_and_b32 v{vt1}, 3, v{vt0}
    v_and_b32 v{vt0}, 28, v{vt0}
    v_lshl_add_u32 v{vt0}, v{vt1}, 6, v{vt0}
    v_mov_b32 v{vt1}, 60
    v_cndmask_b32 v{vt0}, v{vt1}, v{vt0}, s[{sovf}:{sovf+1}]
    ds_permute_b32 v{vb1}, v{vt0}, v{vb1}
    ds_permute_b32 v{vr1}, v{vt0}, v{vr1}
    s_bcnt1_i32_b64 s{st1}, s[{sovf}:{sovf+1}]
    s_mov_b64 s[{smask+18}:{smask+19}], 0
    s_waitcnt lgkmcnt(0)
    s_nop 1
    v_add_u32_dpp v{vha+8}, v{vb1}, v{vi12} row_newbcast:0 row_mask:0xf bank_mask:0xf
    v_sub_u32_dpp v{vt0}, v{vr1}, v{vi12} row_newbcast:0 row_mask:0xf bank_mask:0xf
    v_cmp_lt_i32 s[{smask+16}:{smask+17}], 0, v{vt0}
    s_or_b64 exec, s[{smask+16}:{smask+17}], 1
    buffer_load_dwordx3 v[{vrec+32}:{vrec+34}], v{vha+8}, s[{sWS}:{sWS+3}], 0 offen
    s_mov_b64 exec, -1
    s_cmp_gt_u32 s{st1}, 4
    s_cbranch_scc1 K2_x1
    K2_x1_ret:
    """)
    if o.k2pf:
        a(f"""
        s_lshr_b32 s3, s2, 3
        s_lshl_b32 s3, s3, {9 + o.pfsh}
        v_lshl_add_u32 v{vt0}, v0, {o.pfsh}, s3
        """)
        for i in range(o.k2pf):
            a(f"buffer_load_dword v{vW+40}, v{vt0}, s[{sX}:{sX+3}], 0 offen {o.pfpol}\nv_add_u32 v{vt0}, {32*512 << o.pfsh}, v{vt0}")
    a(f"""
    s_cmp_lg_u64 s[{smore}:{smore+1}], 0
    s_cbranch_scc1 K2_setmore
    K2_setmore_ret:
    """)
    def pass1(r):
        a(f"""
        s_movk_i32 s3, {r*4096 if r*4096 < 32768 else r*4096 - 65536}
        s_mov_b64 exec, s[{smask+2*r}:{smask+2*r+1}]
        v_lshlrev_b32_sdwa v{vha+r}, 2, v{vrec+4*r+2} dst_sel:DWORD dst_unused:UNUSED_PAD src0_sel:DWORD src1_sel:BYTE_0
        ds_add_rtn_u32 v{vrec+4*r+3}, v{vha+r}, v{vfour} offset:{L_CNT}
        ds_write_b64 v{vslot}, v[{vrec+4*r}:{vrec+4*r+1}] offset:{L_COEF + r*4096}
        v_add_u32_sdwa v{vrec+4*r+2}, s3, v{vslot} dst_sel:WORD_0 dst_unused:UNUSED_PRESERVE src0_sel:DWORD src1_sel:DWORD
        """)
    for r in range(9):
        a(f"s_waitcnt vmcnt({8-r+o.k2pf})")
        pass1(r)
    a(f"""
    s_mov_b64 exec, -1
    s_waitcnt lgkmcnt(0)
    s_barrier
    """)
    T.stamp(a)
    a(f"ds_read_b32 v{vt0}, v{vcidx} offset:{L_CNT}")
    for i in range(NW1, 10):
        a(f"buffer_load_dwordx4 v[{vW+4*i}:{vW+4*i+3}], v{vwf}, s[{sWS}:{sWS+3}], 0 offen offset:{1024*i}" if i < 4 else
          f"s_movk_i32 s3, {1024*i}\nbuffer_load_dwordx4 v[{vW+4*i}:{vW+4*i+3}], v{vwf}, s[{sWS}:{sWS+3}], s3 offen")
    a(f"""
    s_lshl_b32 s{st0}, s{sw}, {(CAPW*4).bit_length()-1}
    s_waitcnt lgkmcnt(0)
    v_add_u32 v{vt1}, 4, v{vt0}
    v_and_b32 v{vt1}, -8, v{vt1}
    v_mov_b32 v{vt2}, v{vt1}
    """)
    dpp_scan(a, vt2, full=False)
    a(f"""
    v_lshrrev_b32 v{vsteps}, 3, v{vt1}
    v_readlane_b32 s{st1}, v{vt2}, 31
    v_sub_u32 v{vt2}, v{vt2}, v{vt1}
    v_add_u32 v{vt2}, s{st0}, v{vt2}
    v_add_u32 v{vt0}, v{vt2}, v{vt0}
    s_cmp_gt_u32 s{st1}, {(CAPW-64)*4}
    s_cbranch_scc1 K2_setslow
    s_add_u32 s{st1}, s{st1}, s{st0}
    v_mov_b32 v{vt3}, 0x{DUMMY:x}
    v_lshl_add_u32 v{vt1}, v{vlane}, 2, s{st1}
    ds_write_b32 v{vcidx}, v{vt2} offset:{L_BASE}
    ds_write_b32 v{vt0}, v{vt3} offset:{L_KEYS}
    ds_write_b32 v{vt1}, v{vt3} offset:{L_KEYS}
    K2_setslow_ret:
    v_lshrrev_b32 v{vt0}, 5, v{vlane}
    v_lshl_add_u32 v{vka}, v{vt0}, 2, s{st0}
    v_add_u32 v{vka}, {L_KEYS}, v{vka}
    v_mov_b32 v{vt0}, {L_FLAG}
    s_waitcnt lgkmcnt(0)
    s_barrier
    ds_read_b64 v[{vt1}:{vt1+1}], v{vt0}
    """ if vt1 % 2 == 0 else "ERR")
    for r in range(9):
        a(f"s_mov_b64 exec, s[{smask+2*r}:{smask+2*r+1}]\nds_read_b32 v{vha+r}, v{vha+r} offset:{L_BASE}")
    a(f"""
    s_mov_b64 exec, -1
    s_waitcnt lgkmcnt(0)
    v_readfirstlane_b32 s{st0}, v{vt1}
    v_readfirstlane_b32 s{smore}, v{vt1+1}
    s_cmp_lg_u32 s{st0}, 0
    s_cbranch_scc1 K2_goslow
    """)
    for r in range(9):
        a(f"""
        s_mov_b64 exec, s[{smask+2*r}:{smask+2*r+1}]
        v_add_u32 v{vha+r}, v{vha+r}, v{vrec+4*r+3}
        ds_write_b32 v{vha+r}, v{vrec+4*r+2} offset:{L_KEYS}
        """)
    a(f"""
    s_mov_b64 exec, -1
    s_cmp_lg_u64 s[{smask+18}:{smask+19}], 0
    s_cbranch_scc1 K2_x1b
    K2_x1b_ret:
    s_waitcnt lgkmcnt(0)
    s_barrier
    """)
    T.stamp(a); T.clk(a, 0)
    for i in range(U // 2):
        a(f"ds_read2_b32 v[{vC+4*i}:{vC+4*i+1}], v{vka} offset0:{4*i} offset1:{4*i+2}")
    a(f"ds_read2_b32 v[{vK}:{vK+1}], v{vka} offset0:{2*U} offset1:{2*U+2}")
    a(f"s_mov_b32 s{sidx}, 0\ns_mov_b32 s{stog}, 0\ns_lshr_b32 s{syoung}, s{sw}, 2")
    if o.prio == 2:
        a(f"s_cmp_eq_u32 s{syoung}, 0\ns_cbranch_scc1 K2_noprio\ns_setprio 1\nK2_noprio:")
    for u in range(U):
        k = vC + 4 * (u // 2) + (u & 1)
        if u % 2 == 0:
            a(f"s_waitcnt lgkmcnt({U//2 - u//2})")
        a(f"v_mad_u32_u16 v{vga}, v{k}, s{s512}, v{vlo16} op_sel:[1,0,0,0]")
        a(f"buffer_load_dwordx4 v[{vB+4*u}:{vB+4*u+3}], v{vga}, s[{sX}:{sX+3}], 0 offen")
    for u in range(0, U, 2):
        k = vC + 2 * u
        a(f"v_and_b32 v{vga}, 0xffff, v{k}\nv_and_b32 v{vca}, 0xffff, v{k+1}")
        a(f"ds_read_b64 v[{vC+2*u}:{vC+2*u+1}], v{vga}\nds_read_b64 v[{vC+2*u+2}:{vC+2*u+3}], v{vca}")
    a(f"s_waitcnt lgkmcnt(0)\ns_branch K2_P0")
    for k in range(5):
        acc = vacc + 16 * k
        for u in range(U):
            nxt = f"K2_B{k+1}_{u}" if k < 4 else f"K2_P{u}"
            kcur = vK + 2 * ((u // 2) & 1) + (u & 1)
            knxt = vK + 2 * (((u // 2) + 1) & 1)
            a(f"K2_B{k}_{u}:")
            a(f"s_sub_u32 s{scnt+k}, s{scnt+k}, 1\ns_cbranch_scc1 {nxt}")
            if 'smf' in o.x or 'm16' in o.x:
                if u % 2 == 0:
                    a(f"ds_read2_b32 v[{knxt}:{knxt+1}], v{vka} offset0:{2*(U+u+2)} offset1:{2*(U+u+3)}")
                if 'smf' in o.x:
                    for r in range(2):
                        a(f"v_perm_b32 v{vA+2*(u&1)+r}, v{vC+2*u+1}, v{vC+2*u}, v{vsel+r}")
                else:
                    for r in range(4):
                        a(f"v_perm_b32 v{(vA if u&1 else vW)+r}, v{vC+2*u+1}, v{vC+2*u}, v{vsel+r}")
                if u % 2 == 0:
                    a(f"s_waitcnt lgkmcnt(3)")
                a(f"v_mad_u32_u16 v{vga if u&1 else vt0}, v{kcur}, s{s512}, v{vlo16} op_sel:[1,0,0,0]")
                a(f"v_and_b32 v{vca}, 0xffff, v{kcur}")
                a(f"ds_read_b64 v[{vC+2*u}:{vC+2*u+1}], v{vca}")
                if u == U - 1:
                    a(f"v_add_u32 v{vka}, {8*U}, v{vka}")
                if u & 1:
                    if 'smf' in o.x:
                        a(f"s_waitcnt vmcnt({U-2})")
                        a(f"v_smfmac_f32_32x32x32_bf16 v[{acc}:{acc+15}], v[{vA}:{vA+3}], v[{vB+4*u-4}:{vB+4*u+3}], v{vfour}")
                        a(f"buffer_load_dwordx4 v[{vB+4*u-4}:{vB+4*u-1}], v{vt0}, s[{sX}:{sX+3}], 0 offen")
                    else:
                        a(f"s_waitcnt vmcnt({U-1})")
                        a(f"v_mfma_f32_16x16x32_bf16 v[{acc}:{acc+3}], v[{vA}:{vA+3}], v[{vB+4*u-4}:{vB+4*u-1}], v[{acc}:{acc+3}]")
                        a(f"v_mfma_f32_16x16x32_bf16 v[{acc+4}:{acc+7}], v[{vW}:{vW+3}], v[{vB+4*u-4}:{vB+4*u-1}], v[{acc+4}:{acc+7}]")
                        a(f"buffer_load_dwordx4 v[{vB+4*u-4}:{vB+4*u-1}], v{vt0}, s[{sX}:{sX+3}], 0 offen")
                        a(f"s_waitcnt vmcnt({U-1})")
                        a(f"v_mfma_f32_16x16x32_bf16 v[{acc+8}:{acc+11}], v[{vA}:{vA+3}], v[{vB+4*u}:{vB+4*u+3}], v[{acc+8}:{acc+11}]")
                        a(f"v_mfma_f32_16x16x32_bf16 v[{acc+12}:{acc+15}], v[{vW}:{vW+3}], v[{vB+4*u}:{vB+4*u+3}], v[{acc+12}:{acc+15}]")
                    a(f"buffer_load_dwordx4 v[{vB+4*u}:{vB+4*u+3}], v{vga}, s[{sX}:{sX+3}], 0 offen")
                continue
            if u % 2 == 0:
                a(f"ds_read2_b32 v[{knxt}:{knxt+1}], v{vka} offset0:{2*(U+u+2)} offset1:{2*(U+u+3)}")
            for r in range(4):
                if 'perm' not in o.x: a(f"v_perm_b32 v{vA+r}, v{vC+2*u+1}, v{vC+2*u}, v{vsel+r}")
            if u % 2 == 0:
                a(f"s_waitcnt lgkmcnt(3)" if 'coef' not in o.x else "s_waitcnt lgkmcnt(1)")
            a(f"v_mad_u32_u16 v{vga}, v{kcur}, s{s512}, v{vlo16} op_sel:[1,0,0,0]")
            a(f"v_and_b32 v{vca}, 0xffff, v{kcur}")
            if u == U - 1:
                a(f"v_add_u32 v{vka}, {8*U}, v{vka}")
            a(f"s_waitcnt vmcnt({U-1})")
            if 'mfma' not in o.x: a(f"v_mfma_f32_32x32x16_bf16 v[{acc}:{acc+15}], v[{vA}:{vA+3}], v[{vB+4*u}:{vB+4*u+3}], v[{acc}:{acc+15}]")
            a(f"buffer_load_dwordx4 v[{vB+4*u}:{vB+4*u+3}], v{vga}, s[{sX}:{sX+3}], 0 offen")
            if 'coef' not in o.x: a(f"ds_read_b64 v[{vC+2*u}:{vC+2*u+1}], v{vca}")
        if o.prio == 1:
            a(f"s_xor_b32 s{stog}, s{stog}, s{syoung}\ns_setprio 0\ns_cbranch_scc0 K2_B{k}_0\ns_setprio 1")
        a(f"s_branch K2_B{k}_0")
    for u in range(U):
        a(f"K2_P{u}:\ns_cmp_ge_u32 s{sidx}, {8*NPH}\ns_cbranch_scc1 K2_done\ns_call_b64 s[{sret}:{sret+1}], K2_loadcnt\ns_branch K2_B0_{u}")
    a(f"K2_loadcnt:")
    for k in range(5):
        a(f"v_readlane_b32 s{scnt+k}, v{vsteps}, s{sidx}\ns_add_u32 s{sidx}, s{sidx}, {1 if k < 4 else 4}")
    a(f"s_setpc_b64 s[{sret}:{sret+1}]")

    a(f"""
    K2_x1:
    v_add_u32_dpp v{vha+9}, v{vb1}, v{vi12} row_newbcast:1 row_mask:0xf bank_mask:0xf
    v_sub_u32_dpp v{vt0}, v{vr1}, v{vi12} row_newbcast:1 row_mask:0xf bank_mask:0xf
    v_cmp_lt_i32 s[{smask+18}:{smask+19}], 0, v{vt0}
    s_mov_b64 exec, s[{smask+18}:{smask+19}]
    buffer_load_dwordx3 v[{vrec+36}:{vrec+38}], v{vha+9}, s[{sWS}:{sWS+3}], 0 offen
    s_waitcnt vmcnt(0)
    """)
    pass1(9)
    a(f"""
    s_mov_b64 exec, -1
    s_cmp_le_u32 s{st1}, 8
    s_cbranch_scc1 K2_x1_ret
    v_mov_b32 v{vt0}, {L_FLAG}
    ds_write_b32 v{vt0}, v{vfour}
    s_branch K2_x1_ret
    K2_setmore:
    v_mov_b32 v{vt0}, {L_FLAG}
    ds_write_b32 v{vt0}, v{vfour} offset:4
    s_branch K2_setmore_ret
    K2_setslow:
    v_mov_b32 v{vt0}, {L_FLAG}
    ds_write_b32 v{vt0}, v{vfour}
    s_branch K2_setslow_ret
    K2_goslow:
    s_cmp_eq_u32 s{sW12}, 12
    s_cbranch_scc1 K2_end
    s_movk_i32 s{sW12}, 12
    s_waitcnt vmcnt(0) lgkmcnt(0)
    s_barrier
    s_branch K2_batch
    K2_x1b:
    s_mov_b64 exec, s[{smask+18}:{smask+19}]
    ds_read_b32 v{vha+9}, v{vha+9} offset:{L_BASE}
    s_waitcnt lgkmcnt(0)
    v_add_u32 v{vha+9}, v{vha+9}, v{vrec+39}
    ds_write_b32 v{vha+9}, v{vrec+38} offset:{L_KEYS}
    s_mov_b64 exec, -1
    s_branch K2_x1b_ret
    K2_next:
    s_add_u32 s{sI0}, s{sI0}, s{sW12}
    s_waitcnt vmcnt(0) lgkmcnt(0)
    s_barrier
    s_branch K2_batch
    """)

    def slot(p, q):
        oo = p ^ q
        if p == q: b = p
        elif q == 0: b = 0
        elif p == 0: b = 1
        elif (p, q) in ((2, 3), (3, 1), (1, 2)): b = 2
        else: b = 3
        return oo * 4 + b
    lut = [sum(slot(2 * pi + h, q) << (4 * (h * 4 + q)) for h in range(2) for q in range(4)) for pi in range(2)]
    V.n = al
    vwa = V.get(4)
    vra = V.get(4)
    vP = V.get(8, 4)
    vD = V.get(16, 4)
    assert V.hi <= 256
    vF = vacc
    a(f"""
    K2_done:
    s_cmp_lg_u32 s{smore}, 0
    s_cbranch_scc1 K2_next
    s_waitcnt vmcnt(0) lgkmcnt(0)
    """)
    T.stamp(a); T.clk(a, 1)
    a(f"""
    v_lshrrev_b32 v{vt0}, 3, v{vlane}
    v_lshlrev_b32 v{vt0}, 2, v{vt0}
    v_and_b32 v{vt1}, 7, v{vlane}
    s_lshl_b32 s3, s{sw}, 11
    s_add_u32 s3, s3, {L_T}
    """)
    for pi in range(2):
        a(f"""
        s_mov_b32 s{st0}, 0x{lut[pi]:x}
        v_bfe_u32 v{vt2}, s{st0}, v{vt0}, 4
        v_lshl_add_u32 v{vt2}, v{vt2}, 3, v{vt1}       ; chunk
        v_xor_b32 v{vt2}, s{sw}, v{vt2}
        v_lshl_add_u32 v{vwa+pi}, v{vt2}, 4, s3
        v_xor_b32 v{vwa+2+pi}, 128, v{vwa+pi}
        """)
    for k in range(5):
        acc = vacc + 16 * k
        if k == 4:
            a(f"v_add_u32 v{vwa}, 0x10000, v{vwa}\nv_add_u32 v{vwa+1}, 0x10000, v{vwa+1}")
        for pi in range(2):
            for i in range(4):
                a(f"v_cvt_pk_bf16_f32 v{vP+4*pi+i}, v{acc+8*pi+2*i}, v{acc+8*pi+2*i+1}")
            a(f"ds_write_b128 v{vwa+2*(k&1)+pi}, v[{vP+4*pi}:{vP+4*pi+3}] offset:{(k*16384) & 0xffff}")
    a(f"""
    v_and_b32 v{vt0}, 15, v{vlane}
    v_lshrrev_b32 v{vt1}, 4, v{vlane}
    v_xor_b32 v{vt2}, v{vt0}, v{vt1}
    s_lshr_b32 s{st0}, s{sw}, 2
    s_lshl_b32 s3, s{st0}, 15
    s_add_u32 s3, s3, {L_T}
    v_lshlrev_b32 v{vt2}, 4, v{vt2}
    v_lshl_add_u32 v{vt2}, v{vt0}, 11, v{vt2}
    v_add_u32 v{vra}, s3, v{vt2}
    v_xor_b32 v{vra+1}, 64, v{vra}
    v_xor_b32 v{vra+2}, 128, v{vra}
    v_xor_b32 v{vra+3}, 192, v{vra}
    """)
    for i in range(8):
        a(f"v_xor_b32 v{vW+40+i}, 0x80008000, v{vW+32+i}")
    a(f"""
    s_mul_i32 s3, s{st0}, {16*OSTR}
    s_and_b32 s{st1}, s{sw}, 3
    s_lshl_b32 s{st1}, s{st1}, 5
    s_add_u32 s3, s3, s{st1}
    v_mul_u32_u24 v{vt3}, {OSTR}, v{vt0}
    v_lshl_add_u32 v{vt3}, v{vt1}, 3, v{vt3}
    v_add_u32 v{vt3}, s3, v{vt3}
    s_waitcnt lgkmcnt(0)
    s_barrier
    """)
    T.stamp(a)
    a("K2_tile:")
    frs = [(oo, b, ks) for b in range(4) for ks in range(2) for oo in range(4)]
    NB = 12
    def rd(i):
        oo, b, ks = frs[i]
        chunk = (oo * 4 + b) * 8 + ks * 4
        a(f"ds_read_b128 v[{vF+4*(i%16)}:{vF+4*(i%16)+3}], v{vra+((chunk>>2)&3)} offset:{(chunk>>4)*256}")
    for i in range(NB): rd(i)
    for i in range(32):
        oo, b, ks = frs[i]
        wb = (0 if b == 0 else 1) if oo == 0 else 2 + b
        wreg = vW + 8 * wb + 4 * ks
        a(f"s_waitcnt lgkmcnt({min(NB-1, 31-i)})")
        c = "0" if i < 4 else f"v[{vD+4*oo}:{vD+4*oo+3}]"
        a(f"v_mfma_f32_16x16x32_bf16 v[{vD+4*oo}:{vD+4*oo+3}], v[{wreg}:{wreg+3}], v[{vF+4*(i%16)}:{vF+4*(i%16)+3}], {c}")
        if i + NB < 32: rd(i + NB)
    a("s_nop 7")
    for r in range(4):
        a(f"v_mul_f32 v{vP+r}, 0xbfb8aa3b, v{vD+r}")
    for r in range(4):
        a(f"v_exp_f32 v{vP+r}, v{vP+r}")
    for r in range(4):
        a(f"v_add_f32 v{vP+r}, 1.0, v{vP+r}")
    for r in range(4):
        a(f"v_rcp_f32 v{vP+r}, v{vP+r}")
    a(f"v_cvt_pk_bf16_f32 v{vP+4}, v{vD}, v{vD+1}\nv_cvt_pk_bf16_f32 v{vP+5}, v{vD+2}, v{vD+3}")
    a(f"ds_write_b64 v{vt3}, v[{vP+4}:{vP+5}] offset:{L_OUT}")
    for oo in range(1, 4):
        for r in range(4):
            a(f"v_mul_f32 v{vD+4*oo+r}, v{vP+r}, v{vD+4*oo+r}")
        a(f"v_cvt_pk_bf16_f32 v{vD+4*oo}, v{vD+4*oo}, v{vD+4*oo+1}\nv_cvt_pk_bf16_f32 v{vD+4*oo+1}, v{vD+4*oo+2}, v{vD+4*oo+3}")
        a(f"ds_write_b64 v{vt3}, v[{vD+4*oo}:{vD+4*oo+1}] offset:{L_OUT + 128*oo}")
    a(f"""
    s_cmp_lg_u32 s{st0}, 0
    s_cbranch_scc1 K2_tiles_done
    s_mov_b32 s{st0}, 2
    v_add_u32 v{vra}, 0x10000, v{vra}
    v_add_u32 v{vra+1}, 0x10000, v{vra+1}
    v_add_u32 v{vra+2}, 0x10000, v{vra+2}
    v_add_u32 v{vra+3}, 0x10000, v{vra+3}
    v_add_u32 v{vt3}, {32*OSTR}, v{vt3}
    s_waitcnt lgkmcnt(0)
    s_branch K2_tile
    K2_tiles_done:
    v_lshrrev_b32 v{vt0}, 5, v0                    ; row 0..15
    v_mul_u32_u24 v{vt1}, {OSTR}, v{vt0}
    v_add_u32 v{vt1}, v{vt1}, v{vlo16}
    s_lshl_b32 s3, s{sb}, 9
    v_lshl_add_u32 v{vt2}, v{vt0}, 17, v{vlo16}
    v_add_u32 v{vt2}, s3, v{vt2}
    s_mov_b32 s{st0}, {16<<17}
    v_add_u32 v{vt3}, {32<<17}, v{vt2}
    s_waitcnt lgkmcnt(0)
    s_barrier
    """)
    T.stamp(a)
    a(f"""
    ds_read_b128 v[{vF}:{vF+3}], v{vt1} offset:{L_OUT}
    ds_read_b128 v[{vF+4}:{vF+7}], v{vt1} offset:{L_OUT + 16*OSTR}
    ds_read_b128 v[{vF+8}:{vF+11}], v{vt1} offset:{L_OUT + 32*OSTR}
    s_cmp_ge_u32 s{sw}, 4
    s_waitcnt lgkmcnt(2)
    buffer_store_dwordx4 v[{vF}:{vF+3}], v{vt2}, s[{sO}:{sO+3}], 0 offen {o.k2st}
    s_waitcnt lgkmcnt(1)
    buffer_store_dwordx4 v[{vF+4}:{vF+7}], v{vt2}, s[{sO}:{sO+3}], s{st0} offen {o.k2st}
    s_cbranch_scc1 K2_fin
    s_waitcnt lgkmcnt(0)
    buffer_store_dwordx4 v[{vF+8}:{vF+11}], v{vt3}, s[{sO}:{sO+3}], 0 offen {o.k2st}
    K2_fin:
    """)
    if o.diag:
        T.stamp(a)
        a("s_waitcnt vmcnt(0)")
        T.stamp(a)
        T.dump(a, sWS, vt0, "k2", wave_s=sw)
    a("K2_end:\ns_endpgm")
    return a.text(), nv, 96, lds

def desc(name, nv, ns):
    nv8 = (nv + 7) // 8 * 8
    return f""".p2align 6
.amdhsa_kernel {name}
  .amdhsa_next_free_vgpr {nv8}
  .amdhsa_next_free_sgpr {ns}
  .amdhsa_accum_offset {nv8}
  .amdhsa_group_segment_fixed_size 0
  .amdhsa_kernarg_size 96
  .amdhsa_user_sgpr_count 2
  .amdhsa_user_sgpr_kernarg_segment_ptr 1
  .amdhsa_system_sgpr_workgroup_id_x 1
.end_amdhsa_kernel
"""

def main():
    ap = argparse.ArgumentParser()
    ap.add_argument("-o", default=f"cdna_kernels/{NAME}.s")
    ap.add_argument("--nph", type=int, default=4)
    ap.add_argument("--u", type=int, default=8)
    ap.add_argument("--k1ld", default="nt")
    ap.add_argument("--k1st", default="sc1")
    ap.add_argument("--k2st", default="")
    ap.add_argument("--k1pf", type=int, default=0)
    ap.add_argument("--nw1", type=int, default=5)
    ap.add_argument("--diag", action="store_true")
    ap.add_argument("--mall", type=int, default=0)
    ap.add_argument("--mallsh", type=int, default=7)
    ap.add_argument("--k2pf", type=int, default=0)
    ap.add_argument("--pfsh", type=int, default=7)
    ap.add_argument("--pfpol", default="")
    ap.add_argument("--prio", type=int, default=0)
    ap.add_argument("--x", default="", help="experiments that break correctness: mfma,perm,coef")
    o = ap.parse_args()
    k1, nv1, ns1, lds1 = gen_k1(o)
    k2, nv2, ns2, lds2 = gen_k2(o)
    hdr = open(f"cdna_kernels/{NAME}.s.ref").read().split("; Override launch")[0]
    k1n = "bin_edges_kernel"; k2n = f"{NAME}_kernel"
    s = hdr
    s += f"; @launch kernel={k1n} grid=({NPROD+4},1,1) block=(704,1,1) lds={lds1}\n"
    s += f"; @launch kernel={k2n} grid=(256,1,1) block=(512,1,1) lds={lds2}\n"
    s += '.amdgcn_target "amdgcn-amd-amdhsa--gfx950"\n.text\n'
    for n, t in ((k1n, k1), (k2n, k2)):
        s += f".globl {n}\n.p2align 8\n.type {n},@function\n{n}:\n{t}"
    s += '.section .rodata,"a"\n' + desc(k1n, nv1, ns1) + desc(k2n, nv2, ns2)
    open(o.o, "w").write(s)
    print(f"wrote {o.o}: k1 vgpr {nv1} lds {lds1}; k2 vgpr {nv2} lds {lds2}")

if __name__ == "__main__":
    main()
```

```python
import sys, argparse

NAME = "standalone__tensor_product_equiv_equiformer__graph"

class Asm:
    def __init__(self):
        self.lines = []
    def __call__(self, s):
        for l in s.strip("\n").split("\n"):
            l = l.strip()
            if not l:
                continue
            if l.endswith(":") or l.startswith("."):
                self.lines.append(l)
            else:
                self.lines.append("    " + l)
    def text(self):
        return "\n".join(self.lines) + "\n"

class Regs:
    def __init__(self, prefix, start=0):
        self.p = prefix; self.n = start; self.hi = start
    def get(self, cnt=1, align=1):
        self.n = (self.n + align - 1) // align * align
        r = self.n; self.n += cnt; self.hi = max(self.hi, self.n)
        return r

def vr(a, n=1):
    return f"v{a}" if n == 1 else f"v[{a}:{a+n-1}]"
def sr(a, n=1):
    return f"s{a}" if n == 1 else f"s[{a}:{a+n-1}]"

NPROD = 250
CHUNK = 2560
RECB = CHUNK * 12
WS_REC = 0
WS_WF = NPROD * RECB
WS_OFF = WS_WF + 40 * 1024
WS_END = WS_OFF + NPROD * 1024
WS_TS = 0x1000000

def dpp_scan(a, v, full=True):
    for sh in (1, 2, 4, 8):
        a(f"s_nop 1\nv_add_u32_dpp v{v}, v{v}, v{v} row_shr:{sh} row_mask:0xf bank_mask:0xf")
    a(f"s_nop 1\nv_add_u32_dpp v{v}, v{v}, v{v} row_bcast:15 row_mask:0xa bank_mask:0xf")
    if full:
        a(f"s_nop 1\nv_add_u32_dpp v{v}, v{v}, v{v} row_bcast:31 row_mask:0xc bank_mask:0xf")

class Stamps:
    def __init__(self, on, base_s, slot):
        self.on = on; self.base = base_s; self.n = 0; self.slot = slot
    def stamp(self, a):
        if not self.on: return
        a(f"s_memrealtime s[{self.base+2*self.n}:{self.base+2*self.n+1}]")
        self.n += 1
    def clk(self, a, i):
        if not self.on: return
        a(f"s_memtime s[{self.base+24+2*i}:{self.base+25+2*i}]")
        self.hasclk = True
    def dump(self, a, ws_pair, vt, tag, wave_s=None):
        if not self.on: return
        a(f"""s_waitcnt lgkmcnt(0)
        s_mov_b64 exec, 1
        s_lshl_b32 s3, s2, 10
        s_add_u32 s3, s3, {WS_TS + self.slot*0x40000}""")
        if wave_s is not None:
            a(f"s_lshl_b32 s{wave_s}, s{wave_s}, 6\ns_add_u32 s3, s3, s{wave_s}")
        a(f"v_mov_b32 v{vt}, s3")
        for i in list(range(self.n)) + ([12, 13] if getattr(self, 'hasclk', False) else []):
            a(f"v_mov_b32 v{vt+1}, s{self.base+2*i}\nglobal_store_dword v{vt}, v{vt+1}, s[{ws_pair}:{ws_pair+1}] offset:{4*i}")

def gen_k1(o):
    a = Asm()
    NPH = o.nph
    PHC = (NPH << 24) // 10000 if NPH > 1 else 0
    assert (9999 * PHC) >> 24 == NPH - 1 and PHC < 32768
    HIST = RECB
    BASE = RECB + 1024
    ld = o.k1ld; st = o.k1st
    T = Stamps(o.diag, 40, 0)
    T.stamp(a)
    a(f"""
    s_cmp_ge_u32 s2, {NPROD}
    s_cbranch_scc1 K1_prep
    s_load_dwordx8 s[4:11], s[0:1], 8
    s_load_dwordx2 s[12:13], s[0:1], 88      ; ws
    v_lshrrev_b32 v1, 6, v0
    s_mul_i32 s3, s2, {CHUNK*4}
    v_readfirstlane_b32 s14, v1
    v_lshl_add_u32 v2, v0, 4, s3
    s_cmp_ge_u32 s14, 10
    s_cbranch_scc1 K1_helper
    v_lshrrev_b32 v3, 1, v2
    v_add_u32 v4, v2, v3
    v_mov_b32 v5, 12
    s_waitcnt lgkmcnt(0)
    global_load_dwordx4 v[8:11], v2, s[10:11] {ld}       ; dst
    global_load_dwordx4 v[12:15], v2, s[8:9] {ld}        ; src
    global_load_dwordx2 v[16:17], v3, s[6:7] {ld}        ; e_attr
    global_load_dwordx3 v[18:20], v4, s[4:5] {ld}        ; rhat e0,e1
    global_load_dwordx3 v[22:24], v4, s[4:5] offset:12 {ld}  ; rhat e2,e3
    s_mov_b32 s15, 0xffff0000
    s_movk_i32 s16, {PHC}
    s_movk_i32 s17, 0x4001
    s_barrier
    s_waitcnt vmcnt(4)
    """)
    T.stamp(a)
    for i in range(4):
        a(f"v_lshlrev_b32_sdwa v{26+i}, 2, v{8+i} dst_sel:DWORD dst_unused:UNUSED_PAD src0_sel:DWORD src1_sel:BYTE_0")
        a(f"ds_add_rtn_u32 v{30+i}, v{26+i}, v5 offset:{HIST}")
    a("s_waitcnt lgkmcnt(0)\ns_barrier\ns_waitcnt vmcnt(3)")
    for i in range(4):
        k = 38 + 4 * i
        a(f"v_mul_u32_u24 v{k}, s16, v{12+i}")
        a(f"v_mul_u32_u24_sdwa v{k+1}, s17, v{8+i} dst_sel:DWORD dst_unused:UNUSED_PAD src0_sel:DWORD src1_sel:BYTE_1")
        a(f"v_lshlrev_b32_sdwa v{k}, 6, v{k} dst_sel:DWORD dst_unused:UNUSED_PAD src0_sel:DWORD src1_sel:BYTE_3")
        a(f"v_or_b32 v{k}, v{k}, v{k+1}")
        a(f"v_lshl_or_b32 v{k}, v{k}, 16, v{12+i}")
    a("s_waitcnt vmcnt(1)")
    def unpack(dst, src, hi):
        a(f"v_and_b32 v{dst}, s15, v{src}" if hi else f"v_lshlrev_b32 v{dst}, 16, v{src}")
    for i in range(4):
        if i == 2:
            a("s_waitcnt vmcnt(0)")
            T.stamp(a)
        R = 18 if i < 2 else 22
        c = 36 + 4 * i
        unpack(8, 16 + i // 2, i & 1)
        for j in range(3):
            el = 3 * (i & 1) + j
            unpack(9 + j, R + el // 2, el & 1)
        for j in range(3):
            a(f"v_mul_f32 v{9+j}, v8, v{9+j}")
        a(f"v_cvt_pk_bf16_f32 v{c}, v8, v9")
        a(f"v_cvt_pk_bf16_f32 v{c+1}, v10, v11")
    a("s_barrier")
    T.stamp(a)
    for i in range(4):
        a(f"ds_read_b32 v{26+i}, v{26+i} offset:{BASE}")
    a(f"v_lshlrev_b32 v6, 4, v0\ns_mul_i32 s3, s2, {RECB}\nv_add_u32 v7, s3, v6")
    for i in range(4):
        a(f"s_waitcnt lgkmcnt({3 + i})")
        a(f"v_add_u32 v{26+i}, v{26+i}, v{30+i}")
        a(f"ds_write2_b32 v{26+i}, v{36+4*i}, v{37+4*i} offset0:0 offset1:1")
        a(f"ds_write_b32 v{26+i}, v{38+4*i} offset:8")
    a(f"""
    v_add_u32 v20, 10240, v7
    v_add_u32 v21, 20480, v7
    s_waitcnt lgkmcnt(0)
    s_barrier
    """)
    T.stamp(a)
    a(f"""
    ds_read_b128 v[8:11], v6
    ds_read_b128 v[12:15], v6 offset:10240
    ds_read_b128 v[16:19], v6 offset:20480
    s_waitcnt lgkmcnt(2)
    global_store_dwordx4 v7, v[8:11], s[12:13] {st}
    s_waitcnt lgkmcnt(1)
    global_store_dwordx4 v20, v[12:15], s[12:13] {st}
    s_waitcnt lgkmcnt(0)
    global_store_dwordx4 v21, v[16:19], s[12:13] {st}
    """)
    if o.diag:
        T.stamp(a)
        a("s_waitcnt vmcnt(0)")
        T.stamp(a)
        T.dump(a, 12, 30, "k1", wave_s=14)
    a("s_endpgm")

    a(f"""
    K1_helper:
    v_and_b32 v1, 63, v0
    v_lshlrev_b32 v2, 4, v1
    v_mov_b32 v4, 0
    v_mov_b32 v5, 0
    v_mov_b32 v6, 0
    v_mov_b32 v7, 0
    ds_write_b128 v2, v[4:7] offset:{HIST}
    s_lshl_b32 s3, s2, 10
    s_add_u32 s3, s3, {WS_OFF}
    v_add_u32 v3, s3, v2
    s_waitcnt lgkmcnt(0)
    """)
    npf = o.k1pf
    if npf:
        a(f"""
        s_load_dwordx2 s[20:21], s[0:1], 0
        s_lshr_b32 s17, s2, 3
        s_mul_i32 s17, s17, {npf*8192}
        v_lshlrev_b32 v20, 7, v1
        v_add_u32 v20, s17, v20
        s_mov_b32 s22, 5120000
        s_mov_b32 s23, 0x20000
        s_waitcnt lgkmcnt(0)
        """)
    if o.mall:
        a(f"""
        s_load_dwordx2 s[20:21], s[0:1], 0
        s_mul_i32 s17, s2, 20480
        v_lshlrev_b32 v20, {o.mallsh}, v1
        v_add_u32 v20, s17, v20
        s_add_u32 s22, s17, 20480
        s_mov_b32 s23, 0x20000
        s_waitcnt lgkmcnt(0)
        """)
    def mall():
        for i in range(-(-20480 // (64 << o.mallsh))):
            a(f"buffer_load_dword v21, v20, s[20:23], 0 offen\nv_add_u32 v20, {64 << o.mallsh}, v20")
    a("s_barrier")
    if o.mall == 1: mall()
    if npf:
        for i in range(npf):
            a(f"buffer_load_dword v21, v20, s[20:23], 0 offen\nv_add_u32 v20, 8192, v20")
    a("s_barrier")
    if o.mall == 2: mall()
    a(f"""
    ds_read_b128 v[4:7], v2 offset:{HIST}
    s_waitcnt lgkmcnt(0)
    v_add_u32 v9, v4, v5
    v_add_u32 v10, v9, v6
    v_add_u32 v11, v10, v7
    v_mov_b32 v12, v11
    """)
    dpp_scan(a, 12)
    a(f"""
    v_sub_u32 v16, v12, v11
    v_add_u32 v17, v16, v4
    v_add_u32 v18, v16, v9
    v_add_u32 v19, v16, v10
    ds_write_b128 v2, v[16:19] offset:{BASE}
    v_lshl_or_b32 v4, v4, 16, v16
    v_lshl_or_b32 v5, v5, 16, v17
    v_lshl_or_b32 v6, v6, 16, v18
    v_lshl_or_b32 v7, v7, 16, v19
    s_waitcnt lgkmcnt(0)
    s_barrier
    global_store_dwordx4 v3, v[4:7], s[12:13] {st}
    s_barrier
    s_endpgm
    """)

    a(f"""
    K1_prep:
    s_cmp_ge_u32 s2, {NPROD+4}
    s_cbranch_scc1 K1_end
    s_load_dwordx4 s[4:7], s[0:1], 40
    s_load_dwordx2 s[8:9], s[0:1], 56        ; w_si1
    s_load_dwordx2 s[12:13], s[0:1], 88      ; ws
    v_lshrrev_b32 v1, 6, v0
    s_sub_u32 s15, s2, {NPROD}               ; ct
    v_readfirstlane_b32 s14, v1              ; f
    v_and_b32 v1, 63, v0
    s_cmp_ge_u32 s14, 10
    s_cbranch_scc1 K1_end
    v_lshrrev_b32 v2, 4, v1                  ; g
    v_and_b32 v3, 15, v1                     ; m
    s_lshr_b32 s16, s14, 2
    s_lshl_b32 s16, s16, 7                   ; 128*(f>>2)
    s_and_b32 s17, s14, 3
    s_cmp_lt_u32 s14, 8
    s_cselect_b32 s18, 4, 5
    s_cselect_b32 s19, 64, 2                 ; A
    s_cselect_b32 s20, 2, 4                  ; B
    s_cselect_b32 s21, 2, 3
    s_lshl_b32 s17, s17, s18
    s_add_u32 s16, s16, s17
    v_lshlrev_b32 v4, s21, v2
    v_add_u32 v4, s16, v4                    ; Rb
    v_add_u32 v5, s19, v4                    ; Rb + A
    v_add_u32 v6, s20, v4                    ; Rb + B
    v_add_u32 v7, s20, v5                    ; Rb + A + B
    s_cmp_lt_u32 s14, 4
    s_cselect_b32 s17, 0, {128*128}          ; rows of w_si1 start at R = 128
    s_lshl_b32 s18, s15, 5
    s_sub_u32 s17, s18, s17
    v_lshl_add_u32 v3, v3, 1, s17
    s_mul_i32 s18, s15, 10
    s_add_u32 s18, s18, s14
    s_lshl_b32 s18, s18, 10
    s_add_u32 s18, s18, {WS_WF}
    v_lshl_add_u32 v28, v1, 4, s18
    s_waitcnt lgkmcnt(0)
    s_cmp_lt_u32 s14, 4
    s_cselect_b32 s10, s6, s8
    s_cselect_b32 s11, s7, s9
    """)
    for j in range(4):
        a(f"""
        v_lshlrev_b32 v20, 1, v{4+j}
        v_lshl_add_u32 v21, v{4+j}, 7, v3
        global_load_dword v{8+j}, v20, s[4:5]
        global_load_ushort v{12+2*j}, v21, s[10:11]
        global_load_ushort v{13+2*j}, v21, s[10:11] offset:128
        """)
    a("s_waitcnt vmcnt(0)")
    for i in range(8):
        a(f"v_lshlrev_b32 v{12+i}, 16, v{12+i}")
        a(f"v_and_b32 v20, 0xffff0000, v{8+i//2}" if i & 1 else f"v_lshlrev_b32 v20, 16, v{8+i//2}")
        a(f"v_mul_f32 v{12+i}, v20, v{12+i}")
    for i in range(4):
        a(f"v_cvt_pk_bf16_f32 v{24+i}, v{12+2*i}, v{13+2*i}")
    a(f"""
    global_store_dwordx4 v28, v[24:27], s[12:13] {st}
    K1_end:
    s_endpgm
    """)
    return a.text(), 56, 64, RECB + 2048

def gen_k2(o):
    a = Asm()
    NT = 768
    NR0 = 6
    NR = NR0 + 2
    CAPW = 512
    TSTR = 1440
    OSTR = 528
    L_CNT = 0
    L_FLAG = 4096
    L_BASE = L_FLAG + 16
    L_KEYS = L_BASE + 4096
    L_COEF = L_KEYS + 10 * CAPW * 4
    ZSLOT = NR * NT
    L_ZERO = L_COEF + ZSLOT * 8
    L_T = L_ZERO + 16
    L_END = L_T + 40 * TSTR
    L_OUT = L_COEF
    lds = L_END
    assert lds <= 163840 and lds <= 131072 + L_COEF and L_KEYS % 16 == 0 and L_T % 16 == 0
    DUMMY = (ZSLOT << 16) | 0xFFFF

    V = Regs("v", 1)
    vt0 = V.get(); vt1 = V.get(); vt2 = V.get(); vt3 = V.get()
    voffs = V.get()
    vA = V.get(4, 2)
    vbase, vrem, vb1, vr1 = vA, vA + 1, vA + 2, vA + 3
    vKT = vt1
    vpb = V.get(); vi12 = V.get(); vslot = V.get(); vfour = V.get(); vcidx = V.get(); vwf = V.get()
    vlo4 = V.get(); vKc = V.get(); vidx = V.get(); vka = V.get(); vkt = V.get()
    vacc = V.get(64, 2)
    vW = V.get(40, 2)
    vB = V.get(32, 2)
    vK = V.get(8, 2)
    vrec = vB; vha = vK
    nv = V.hi
    assert nv <= 168, nv
    assert vt1 % 2 == 0

    sX = 4; sWS = 8; sO = 12
    sb = 16; sw = 17; sI0 = 18; sW12 = 19; sn = 20; s512 = 21; st0 = 22; st1 = 23; sM = 24; stot = 25; sq = 26
    smask = 32
    sovf = 52; smore = 54
    T = Stamps(o.diag, 60, 1)
    T.stamp(a)
    def wload(i):
        if i < 4: a(f"buffer_load_dwordx4 v[{vW+4*i}:{vW+4*i+3}], v{vwf}, s[{sWS}:{sWS+3}], 0 offen offset:{1024*i}")
        else: a(f"s_movk_i32 s3, {1024*i}\nbuffer_load_dwordx4 v[{vW+4*i}:{vW+4*i+3}], v{vwf}, s[{sWS}:{sWS+3}], s3 offen")
    a(f"""
    s_cmp_ge_u32 s2, 256
    s_cbranch_scc1 K2_end
    s_load_dwordx2 s[{sWS}:{sWS+1}], s[0:1], 88
    s_load_dwordx2 s[{sX}:{sX+1}], s[0:1], 0
    s_load_dwordx2 s[{sO}:{sO+1}], s[0:1], 72
    v_lshrrev_b32 v{vt0}, 6, v0
    v_and_b32 v{vt1}, 15, v0
    v_readfirstlane_b32 s{sw}, v{vt0}
    s_and_b32 s{sb}, s2, 7
    s_lshl_b32 s{sb}, s{sb}, 5
    s_lshr_b32 s3, s2, 3
    s_or_b32 s{sb}, s{sb}, s3                      ; bucket
    v_lshrrev_b32 v{vt0}, 4, v0
    v_mad_u32_u24 v{vt0}, v{vt1}, 48, v{vt0}       ; producer p = row + 48*(lane&15)
    s_lshl_b32 s3, s{sb}, 2
    s_add_u32 s3, s3, {WS_OFF}
    v_lshl_add_u32 v{vt2}, v{vt0}, 10, s3
    v_mov_b32 v{voffs}, 0
    s_mov_b32 s{sWS+2}, {WS_END}
    s_mov_b32 s{sWS+3}, 0x20000
    s_mov_b32 s{sX+2}, 5120000
    s_mov_b32 s{sX+3}, 0x20000
    s_mov_b32 s{sO+2}, 5120000
    s_mov_b32 s{sO+3}, 0x20000
    s_mov_b32 exec_lo, 0x003f003f
    s_mov_b32 exec_hi, 0x003f003f
    s_waitcnt lgkmcnt(0)
    buffer_load_dword v{voffs}, v{vt2}, s[{sWS}:{sWS+3}], 0 offen
    s_mov_b64 exec, -1
    v_mul_u32_u24 v{vpb}, {RECB}, v{vt0}
    v_mul_u32_u24 v{vi12}, 12, v{vt1}
    v_lshlrev_b32 v{vslot}, 3, v0
    v_add_u32 v{vslot}, {L_COEF}, v{vslot}
    v_mov_b32 v{vfour}, 4
    s_movk_i32 s{s512}, 512
    s_mov_b32 s{sI0}, 0
    s_movk_i32 s{sW12}, 384
    s_mov_b32 s{sM}, 0xc000ffff
    v_and_b32 v{vt3}, 63, v0                       ; lane
    s_and_b32 s3, s{sw}, 3
    s_mul_i32 s3, s3, 10240
    s_add_u32 s3, s3, {WS_WF}
    v_lshl_add_u32 v{vwf}, v{vt3}, 4, s3
    v_and_b32 v{vt0}, 31, v0
    v_lshlrev_b32 v{vlo4}, 2, v{vt0}
    v_and_b32 v{vt2}, 3, v0                        ; c
    v_lshlrev_b32 v{vt0}, 17, v{vt2}
    v_sub_u32 v{vKc}, {L_COEF}, v{vt0}
    v_lshrrev_b32 v{vt0}, 2, v{vt3}
    v_lshl_add_u32 v{vt0}, v{vt0}, 6, v{vt2}
    s_lshl_b32 s3, s{sw}, 2
    v_add_lshl_u32 v{vcidx}, v{vt0}, s3, 2
    v_bfe_u32 v{vt0}, v0, 4, 1
    v_mul_u32_u24 v{vt0}, 0x5555, v{vt0}
    v_add_u32 v{vidx}, 0x8888, v{vt0}
    """)
    for i in range(64):
        a(f"v_mov_b32 v{vacc+i}, 0")
    a(f"""
    K2_batch:
    v_lshlrev_b32 v{vt0}, 3, v0
    v_mov_b32 v{vt1}, 0
    v_mov_b32 v{vt2}, 0
    ds_write_b64 v{vt0}, v[{vt1}:{vt2}] offset:{L_CNT}
    v_mov_b32 v{vt0}, {L_ZERO}
    ds_write_b64 v{vt0}, v[{vt1}:{vt2}]
    v_lshlrev_b32 v{vrec+3}, 16, v0
    """)
    for r in range(1, NR):
        a(f"v_add_u32 v{vrec+4*r+3}, {(r*NT) << 16}, v{vrec+3}")
    a(f"""
    s_mul_i32 s{st0}, s{sw}, {CAPW*4}
    s_add_u32 s3, s{st0}, {L_KEYS}
    v_bfe_u32 v{vt0}, v0, 5, 1
    v_lshl_add_u32 v{vka}, v{vt0}, 4, s3
    v_lshl_add_u32 v{vkt}, v{vt0}, 5, s3
    v_and_b32 v{vt0}, 12, v0
    v_add_u32 v{vkt}, v{vkt}, v{vt0}
    s_waitcnt lgkmcnt(0)
    s_barrier
    """)
    NW1 = o.nw1
    for i in range(NW1): wload(i)
    a(f"s_waitcnt vmcnt({NW1})")
    T.stamp(a)
    a(f"""
    v_and_b32 v{vt0}, 0xffff, v{voffs}
    v_lshrrev_b32 v{vt1}, 16, v{voffs}
    v_add3_u32 v{vbase}, v{vpb}, v{vt0}, s{sI0}
    v_subrev_u32 v{vt1}, s{sI0}, v{vt1}
    v_min_i32 v{vrem}, s{sW12}, v{vt1}
    v_cmp_lt_i32 s[{smore}:{smore+1}], s{sW12}, v{vt1}
    """)
    def rload(r, b, rm, col, force=True):
        a(f"""
        v_add_u32_dpp v{vha+r}, v{b}, v{vi12} row_newbcast:{col} row_mask:0xf bank_mask:0xf
        v_sub_u32_dpp v{vt0}, v{rm}, v{vi12} row_newbcast:{col} row_mask:0xf bank_mask:0xf
        v_cmp_lt_i32 s[{smask+2*r}:{smask+2*r+1}], 0, v{vt0}
        s_or_b64 exec, s[{smask+2*r}:{smask+2*r+1}], 1
        buffer_load_dwordx3 v[{vrec+4*r}:{vrec+4*r+2}], v{vha+r}, s[{sWS}:{sWS+3}], 0 offen
        s_mov_b64 exec, -1
        """)
    for r in range(NR0): rload(r, vbase, vrem, r)
    X0 = NR0; X1 = NR0 + 1
    a(f"""
    v_subrev_u32 v{vr1}, 192, v{vrem}
    v_add_u32 v{vb1}, 192, v{vbase}
    v_cmp_lt_i32 s[{sovf}:{sovf+1}], 0, v{vr1}
    v_mov_b32 v{vt2}, 60
    s_mov_b64 s[{smask+2*X1}:{smask+2*X1+1}], 0
    v_mbcnt_lo_u32_b32 v{vt0}, s{sovf}, 0
    v_mbcnt_hi_u32_b32 v{vt0}, s{sovf+1}, v{vt0}
    v_and_b32 v{vt1}, 3, v{vt0}
    v_and_b32 v{vt0}, 28, v{vt0}
    v_lshl_add_u32 v{vt0}, v{vt1}, 6, v{vt0}
    v_cndmask_b32 v{vt0}, v{vt2}, v{vt0}, s[{sovf}:{sovf+1}]
    ds_permute_b32 v{vb1}, v{vt0}, v{vb1}
    ds_permute_b32 v{vr1}, v{vt0}, v{vr1}
    s_bcnt1_i32_b64 s{st1}, s[{sovf}:{sovf+1}]
    s_waitcnt lgkmcnt(0)
    s_nop 1
    """)
    rload(X0, vb1, vr1, 0)
    a(f"""
    s_cmp_gt_u32 s{st1}, 4
    s_cbranch_scc1 K2_x1
    K2_x1_ret:
    s_cmp_lg_u64 s[{smore}:{smore+1}], 0
    s_cbranch_scc1 K2_setmore
    K2_setmore_ret:
    """)
    def pass1(r):
        a(f"""
        s_mov_b64 exec, s[{smask+2*r}:{smask+2*r+1}]
        v_bfe_u32 v{vha+r}, v{vrec+4*r+2}, 14, 12
        v_and_or_b32 v{vrec+4*r+2}, v{vrec+4*r+2}, s{sM}, v{vrec+4*r+3}
        ds_add_rtn_u32 v{vrec+4*r+3}, v{vha+r}, v{vfour} offset:{L_CNT}
        ds_write_b64 v{vslot}, v[{vrec+4*r}:{vrec+4*r+1}] offset:{r*NT*8}
        """)
    for r in range(NR0 + 1):
        a(f"s_waitcnt vmcnt({NR0-r})")
        pass1(r)
    a(f"""
    s_mov_b64 exec, -1
    s_waitcnt lgkmcnt(0)
    s_barrier
    """)
    T.stamp(a)
    a(f"ds_read_b32 v{vt0}, v{vcidx} offset:{L_CNT}")
    for i in range(NW1, 10): wload(i)
    a(f"""
    s_cmp_ge_u32 s{sw}, 10
    s_cbranch_scc1 K2_setslow_ret
    s_waitcnt lgkmcnt(0)
    v_mov_b32 v{vt2}, v{vt0}
    """)
    dpp_scan(a, vt2, full=True)
    a(f"""
    v_and_b32 v{vt1}, 63, v0
    v_readlane_b32 s{stot}, v{vt2}, 63
    v_sub_u32 v{vt2}, v{vt2}, v{vt0}
    v_add_u32 v{vt2}, s{st0}, v{vt2}
    s_cmp_gt_u32 s{stot}, {(CAPW-64)*4}
    s_cbranch_scc1 K2_setslow
    s_add_u32 s{st1}, s{stot}, s{st0}
    v_mov_b32 v{vt3}, 0x{DUMMY:x}
    v_lshl_add_u32 v{vt1}, v{vt1}, 2, s{st1}
    ds_write_b32 v{vcidx}, v{vt2} offset:{L_BASE}
    ds_write_b32 v{vt1}, v{vt3} offset:{L_KEYS}
    K2_setslow_ret:
    v_mov_b32 v{vt0}, {L_FLAG}
    s_waitcnt lgkmcnt(0)
    s_barrier
    ds_read_b64 v[{vt1}:{vt1+1}], v{vt0}
    """)
    for r in range(NR0 + 1):
        a(f"s_mov_b64 exec, s[{smask+2*r}:{smask+2*r+1}]\nds_read_b32 v{vha+r}, v{vha+r} offset:{L_BASE}")
    a(f"""
    s_mov_b64 exec, -1
    s_waitcnt lgkmcnt(0)
    v_readfirstlane_b32 s{st1}, v{vt1}
    v_readfirstlane_b32 s{smore}, v{vt1+1}
    s_cmp_lg_u32 s{st1}, 0
    s_cbranch_scc1 K2_goslow
    """)
    for r in range(NR0 + 1):
        a(f"""
        s_mov_b64 exec, s[{smask+2*r}:{smask+2*r+1}]
        v_add_u32 v{vha+r}, v{vha+r}, v{vrec+4*r+3}
        ds_write_b32 v{vha+r}, v{vrec+4*r+2} offset:{L_KEYS}
        """)
    a(f"""
    s_mov_b64 exec, -1
    s_cmp_lg_u64 s[{smask+2*X1}:{smask+2*X1+1}], 0
    s_cbranch_scc1 K2_x1b
    K2_x1b_ret:
    s_waitcnt lgkmcnt(0)
    s_barrier
    """)
    T.stamp(a); T.clk(a, 0)
    def keys_read():
        a(f"""
        ds_read_b128 v[{vK}:{vK+3}], v{vka}
        ds_read_b128 v[{vK+4}:{vK+7}], v{vka} offset:32
        ds_read2_b32 v[{vKT}:{vKT+1}], v{vkt} offset0:0 offset1:4
        v_add_u32 v{vka}, 64, v{vka}
        v_add_u32 v{vkt}, 64, v{vkt}
        """)
    def addr_calc():
        for r in range(8):
            a(f"v_mad_u32_u16 v{vK+r}, v{vK+r}, s{s512}, v{vlo4}")
        for r in range(2):
            a(f"v_mad_u32_u16 v{vKT+r}, v{vKT+r}, 8, v{vKc} op_sel:[1,0,0,0]")
    def row_loads(r0, r1):
        for r in range(r0, r1):
            for q in range(4):
                a(f"buffer_load_dword v{vB+8*q+r}, v{vK+r}, s[{sX}:{sX+3}], 0 offen offset:{128*q}")
    def col_loads(q):
        for r in range(8):
            a(f"buffer_load_dword v{vB+8*q+r}, v{vK+r}, s[{sX}:{sX+3}], 0 offen offset:{128*q}")
    def tr_reads():
        a(f"ds_read_b64_tr_b16 v[{vA}:{vA+1}], v{vKT}\nds_read_b64_tr_b16 v[{vA+2}:{vA+3}], v{vKT+1}")
    def smf(q):
        if 'mfma' not in o.x:
            a(f"v_smfmac_f32_32x32x32_bf16 v[{vacc+16*q}:{vacc+16*q+15}], v[{vA}:{vA+3}], v[{vB+8*q}:{vB+8*q+7}], v{vidx}")
    a(f"""
    s_cmp_ge_u32 s{sw}, 10
    s_cbranch_scc1 K2_done
    s_cmp_eq_u32 s{stot}, 0
    s_cbranch_scc1 K2_done
    """)
    keys_read()
    a(f"s_sub_i32 s{sn}, s{stot}, 64")
    if o.prio == 3:
        a(f"s_lshr_b32 s{sq}, s{stot}, 2\ns_setprio 3")
    a("s_waitcnt lgkmcnt(0)")
    addr_calc()
    if o.order == "row":
        row_loads(0, 8)
        a("K2_loop:")
        tr_reads()
        keys_read()
        a("s_waitcnt lgkmcnt(0)")
        addr_calc()
        a(f"s_cmp_le_i32 s{sn}, 0\ns_waitcnt vmcnt(0)")
        for q in range(4): smf(q)
        a("s_cbranch_scc1 K2_done")
        row_loads(0, 4)
        a(f"s_sub_i32 s{sn}, s{sn}, 64\ns_cmp_le_i32 s{sn}, -32\ns_cbranch_scc1 K2_loop")
        row_loads(4, 8)
        if o.prio == 3:
            a(f"""
            s_mul_i32 s3, s{sq}, 3
            s_cmp_ge_i32 s{sn}, s3
            s_cbranch_scc1 K2_loop
            s_setprio 2
            s_lshl_b32 s3, s{sq}, 1
            s_cmp_ge_i32 s{sn}, s3
            s_cbranch_scc1 K2_loop
            s_setprio 1
            s_cmp_ge_i32 s{sn}, s{sq}
            s_cbranch_scc1 K2_loop
            s_setprio 0
            """)
        a("s_branch K2_loop")
    else:
        for q in range(4): col_loads(q)
        a("K2_loop:")
        tr_reads()
        keys_read()
        a("s_waitcnt lgkmcnt(0)")
        addr_calc()
        a(f"s_cmp_le_i32 s{sn}, 0\ns_cbranch_scc1 K2_last\ns_sub_i32 s{sn}, s{sn}, 64")
        for q in range(4):
            a("s_waitcnt vmcnt(24)")
            smf(q)
            col_loads(q)
        a("s_branch K2_loop\nK2_last:")
        for q in range(4):
            a(f"s_waitcnt vmcnt({24-8*q})")
            smf(q)
        a("s_branch K2_done")

    a("K2_x1:")
    rload(X1, vb1, vr1, 1)
    a("s_waitcnt vmcnt(0)")
    pass1(X1)
    a(f"""
    s_mov_b64 exec, -1
    s_cmp_le_u32 s{st1}, 8
    s_cbranch_scc1 K2_x1_ret
    v_mov_b32 v{vt0}, {L_FLAG}
    ds_write_b32 v{vt0}, v{vfour}
    s_branch K2_x1_ret
    K2_setmore:
    v_mov_b32 v{vt0}, {L_FLAG}
    ds_write_b32 v{vt0}, v{vfour} offset:4
    s_branch K2_setmore_ret
    K2_setslow:
    v_mov_b32 v{vt0}, {L_FLAG}
    ds_write_b32 v{vt0}, v{vfour}
    s_branch K2_setslow_ret
    K2_goslow:
    s_cmp_eq_u32 s{sW12}, 12
    s_cbranch_scc1 K2_end
    s_movk_i32 s{sW12}, 12
    s_waitcnt vmcnt(0) lgkmcnt(0)
    s_barrier
    s_branch K2_batch
    K2_x1b:
    s_mov_b64 exec, s[{smask+2*X1}:{smask+2*X1+1}]
    ds_read_b32 v{vha+X1}, v{vha+X1} offset:{L_BASE}
    s_waitcnt lgkmcnt(0)
    v_add_u32 v{vha+X1}, v{vha+X1}, v{vrec+4*X1+3}
    ds_write_b32 v{vha+X1}, v{vrec+4*X1+2} offset:{L_KEYS}
    s_mov_b64 exec, -1
    s_branch K2_x1b_ret
    K2_next:
    s_add_u32 s{sI0}, s{sI0}, s{sW12}
    s_nop 7
    s_nop 7
    s_waitcnt vmcnt(0) lgkmcnt(0)
    s_barrier
    s_branch K2_batch
    """)

    vP = vB
    vD = vB + 16
    vwa = vK; vwb = vK + 1; vra = vK + 2; voa = vK + 3
    vF = vacc
    a(f"""
    K2_done:
    s_cmp_lg_u32 s{smore}, 0
    s_cbranch_scc1 K2_next
    s_setprio 0
    """)
    T.stamp(a); T.clk(a, 1)
    a(f"""
    v_and_b32 v{vt0}, 15, v0
    v_bfe_u32 v{vt1}, v0, 4, 2
    s_lshr_b32 s{st0}, s{sw}, 2
    s_mul_i32 s3, s{st0}, {16*TSTR}
    s_add_u32 s3, s3, {L_T}
    v_mul_u32_u24 v{vra}, {TSTR}, v{vt0}
    v_lshl_add_u32 v{vra}, v{vt1}, 4, v{vra}
    v_add_u32 v{vra}, s3, v{vra}
    s_mul_i32 s3, s{st0}, {16*OSTR}
    s_and_b32 s{st1}, s{sw}, 3
    s_lshl_b32 s{st1}, s{st1}, 5
    s_add_u32 s3, s3, s{st1}
    v_mul_u32_u24 v{voa}, {OSTR}, v{vt0}
    v_lshl_add_u32 v{voa}, v{vt1}, 3, v{voa}
    v_add_u32 v{voa}, s3, v{voa}
    s_cmp_ge_u32 s{sw}, 10
    s_cbranch_scc1 K2_nodump
    s_mul_i32 s3, s{sw}, {4*TSTR}
    s_add_u32 s3, s3, {L_T}
    v_bfe_u32 v{vt0}, v0, 5, 1
    v_mul_u32_u24 v{vt0}, {TSTR}, v{vt0}
    v_add3_u32 v{vwb}, v{vt0}, v{vlo4}, s3
    v_add_u32 v{vwa}, v{vwb}, v{vlo4}
    """)
    for cp in range(2):
        R = lambda p, q, pi: vacc + 16 * q + 8 * pi + 4 * cp + p
        for pi in range(2):
            a(f"v_add_f32 v{R(1,1,pi)}, v{R(1,1,pi)}, v{R(2,2,pi)}")
            a(f"v_sub_f32 v{R(2,3,pi)}, v{R(2,3,pi)}, v{R(3,2,pi)}")
            a(f"v_sub_f32 v{R(3,1,pi)}, v{R(3,1,pi)}, v{R(1,3,pi)}")
            a(f"v_sub_f32 v{R(1,2,pi)}, v{R(1,2,pi)}, v{R(2,1,pi)}")
            a(f"v_add_f32 v{R(1,1,pi)}, v{R(1,1,pi)}, v{R(3,3,pi)}")
        cv = lambda d, p, q: a(f"v_cvt_pk_bf16_f32 v{d}, v{R(p,q,0)}, v{R(p,q,1)}")
        off = 2 * cp * TSTR
        cv(vP, 0, 0); cv(vP + 1, 1, 1)
        a(f"ds_write_b64 v{vwa}, v[{vP}:{vP+1}] offset:{off}")
        for oo, (p4, q4) in ((1, (2, 3)), (2, (3, 1)), (3, (1, 2))):
            d = vP + 4 * oo
            cv(d, oo, 0); cv(d + 1, 0, oo); cv(d + 2, p4, q4)
            a(f"ds_write_b64 v{vwa}, v[{d}:{d+1}] offset:{off + 256 + 384*(oo-1)}")
            a(f"ds_write_b32 v{vwb}, v{d+2} offset:{off + 512 + 384*(oo-1)}")
    a(f"""
    K2_nodump:
    s_waitcnt vmcnt(0) lgkmcnt(0)
    s_barrier
    """)
    T.stamp(a)
    frs = [(oo, ks) for ks in range(6) for oo in range(4) if not (oo == 0 and ks >= 4)]
    NF = len(frs); NB = 12
    def rd(i):
        oo, ks = frs[i]
        off = 64 * ks + (0 if oo == 0 else 256 + 384 * (oo - 1))
        a(f"ds_read_b128 v[{vF+4*(i%16)}:{vF+4*(i%16)+3}], v{vra} offset:{off}")
    for i in range(NB): rd(i)
    for i in range(NF):
        oo, ks = frs[i]
        wreg = vW + 4 * (ks if oo == 0 else 4 + ks)
        a(f"s_waitcnt lgkmcnt({min(NB-1, NF-1-i)})")
        c = "0" if ks == 0 else f"v[{vD+4*oo}:{vD+4*oo+3}]"
        a(f"v_mfma_f32_16x16x32_bf16 v[{vD+4*oo}:{vD+4*oo+3}], v[{wreg}:{wreg+3}], v[{vF+4*(i%16)}:{vF+4*(i%16)+3}], {c}")
        if i + NB < NF: rd(i + NB)
    for r in range(4):
        a(f"v_mul_f32 v{vP+r}, 0xbfb8aa3b, v{vD+r}")
    for r in range(4):
        a(f"v_exp_f32 v{vP+r}, v{vP+r}")
    for r in range(4):
        a(f"v_add_f32 v{vP+r}, 1.0, v{vP+r}")
    for r in range(4):
        a(f"v_rcp_f32 v{vP+r}, v{vP+r}")
    a(f"v_cvt_pk_bf16_f32 v{vP+4}, v{vD}, v{vD+1}\nv_cvt_pk_bf16_f32 v{vP+5}, v{vD+2}, v{vD+3}")
    a(f"ds_write_b64 v{voa}, v[{vP+4}:{vP+5}] offset:{L_OUT}")
    for oo in range(1, 4):
        for r in range(4):
            a(f"v_mul_f32 v{vD+4*oo+r}, v{vP+r}, v{vD+4*oo+r}")
        a(f"v_cvt_pk_bf16_f32 v{vD+4*oo}, v{vD+4*oo}, v{vD+4*oo+1}\nv_cvt_pk_bf16_f32 v{vD+4*oo+1}, v{vD+4*oo+2}, v{vD+4*oo+3}")
        a(f"ds_write_b64 v{voa}, v[{vD+4*oo}:{vD+4*oo+1}] offset:{L_OUT + 128*oo}")
    a(f"""
    v_lshrrev_b32 v{vt0}, 5, v0                    ; row 0..23
    v_mul_u32_u24 v{vt1}, {OSTR}, v{vt0}
    v_lshl_add_u32 v{vt1}, v{vlo4}, 2, v{vt1}
    s_lshl_b32 s3, s{sb}, 9
    v_lshl_add_u32 v{vt2}, v{vlo4}, 2, s3
    v_lshl_add_u32 v{vt2}, v{vt0}, 17, v{vt2}
    v_add_u32 v{vt3}, {24<<17}, v{vt2}             ; rows past the last node fall outside num_records
    s_waitcnt lgkmcnt(0)
    s_barrier
    """)
    T.stamp(a)
    a(f"""
    ds_read_b128 v[{vF}:{vF+3}], v{vt1} offset:{L_OUT}
    ds_read_b128 v[{vF+4}:{vF+7}], v{vt1} offset:{L_OUT + 24*OSTR}
    s_cmp_ge_u32 s{sw}, 8
    s_waitcnt lgkmcnt(1)
    buffer_store_dwordx4 v[{vF}:{vF+3}], v{vt2}, s[{sO}:{sO+3}], 0 offen {o.k2st}
    s_cbranch_scc1 K2_fin
    s_waitcnt lgkmcnt(0)
    buffer_store_dwordx4 v[{vF+4}:{vF+7}], v{vt3}, s[{sO}:{sO+3}], 0 offen {o.k2st}
    K2_fin:
    """)
    if o.diag:
        T.stamp(a)
        a("s_waitcnt vmcnt(0)")
        T.stamp(a)
        T.dump(a, sWS, vt0, "k2", wave_s=sw)
    a("K2_end:\ns_endpgm")
    return a.text(), nv, 96, lds

def desc(name, nv, ns):
    nv8 = (nv + 7) // 8 * 8
    return f""".p2align 6
.amdhsa_kernel {name}
  .amdhsa_next_free_vgpr {nv8}
  .amdhsa_next_free_sgpr {ns}
  .amdhsa_accum_offset {nv8}
  .amdhsa_group_segment_fixed_size 0
  .amdhsa_kernarg_size 96
  .amdhsa_user_sgpr_count 2
  .amdhsa_user_sgpr_kernarg_segment_ptr 1
  .amdhsa_system_sgpr_workgroup_id_x 1
.end_amdhsa_kernel
"""

def main():
    ap = argparse.ArgumentParser()
    ap.add_argument("-o", default=f"cdna_kernels/{NAME}.s")
    ap.add_argument("--nph", type=int, default=16)
    ap.add_argument("--u", type=int, default=8)
    ap.add_argument("--k1ld", default="")
    ap.add_argument("--k1st", default="sc1")
    ap.add_argument("--k2st", default="nt")
    ap.add_argument("--k1pf", type=int, default=0)
    ap.add_argument("--nw1", type=int, default=5)
    ap.add_argument("--diag", action="store_true")
    ap.add_argument("--order", default="row")
    ap.add_argument("--mall", type=int, default=1)
    ap.add_argument("--mallsh", type=int, default=7)
    ap.add_argument("--k2pf", type=int, default=0)
    ap.add_argument("--pfsh", type=int, default=7)
    ap.add_argument("--pfpol", default="")
    ap.add_argument("--prio", type=int, default=0)
    ap.add_argument("--x", default="", help="experiments that break correctness: mfma,perm,coef")
    o = ap.parse_args()
    k1, nv1, ns1, lds1 = gen_k1(o)
    k2, nv2, ns2, lds2 = gen_k2(o)
    hdr = open(f"cdna_kernels/{NAME}.s.ref").read().split("; Override launch")[0]
    k1n = "bin_edges_kernel"; k2n = f"{NAME}_kernel"
    s = hdr
    s += f"; @launch kernel={k1n} grid=({NPROD+4},1,1) block=(704,1,1) lds={lds1}\n"
    s += f"; @launch kernel={k2n} grid=(256,1,1) block=(768,1,1) lds={lds2}\n"
    s += '.amdgcn_target "amdgcn-amd-amdhsa--gfx950"\n.text\n'
    for n, t in ((k1n, k1), (k2n, k2)):
        s += f".globl {n}\n.p2align 8\n.type {n},@function\n{n}:\n{t}"
    s += '.section .rodata,"a"\n' + desc(k1n, nv1, ns1) + desc(k2n, nv2, ns2)
    open(o.o, "w").write(s)
    print(f"wrote {o.o}: k1 vgpr {nv1} lds {lds1}; k2 vgpr {nv2} lds {lds2}")

if __name__ == "__main__":
    main()
```

```python
import sys, argparse, re
from gen2 import Asm, Regs, Stamps, dpp_scan, desc, NAME

NPROD = 256
CHUNK = 2500
RECB = 40064
WS_OFF = NPROD * RECB
WS_END = WS_OFF + NPROD * 2048

def gen(o):
    a = Asm()
    NPH = o.nph
    PHC = (NPH << 24) // 10000 if NPH > 1 else 0
    assert (9999 * PHC) >> 24 == NPH - 1 and PHC < 32768
    NT = 768
    NR0 = 6; NR = NR0 + 2; X0 = NR0; X1 = NR0 + 1
    CAPW = 512; TSTR = 1440; OSTR = 528; WSTR = 160
    L_CNT = 0; L_FLAG = 1024; L_BASE = L_FLAG + 16; L_KEYS = L_BASE + 1024
    L_COEF = L_KEYS + 12 * CAPW * 4
    ZSLOT = NR * NT
    L_ZERO = L_COEF + ZSLOT * 8
    L_T = L_ZERO + 16
    L_END = L_T + 48 * TSTR
    L_OUT = L_COEF
    L_W = L_T
    P_ST = L_COEF
    P_HIST = L_KEYS + 8192; P_BASE = P_HIST + 1024
    lds = L_END
    assert lds <= 163840 and lds <= 131072 + L_COEF and L_KEYS % 16 == 0 and L_T % 16 == 0 and L_COEF % 16 == 0
    assert P_ST + RECB <= L_ZERO and P_ST + 30720 < 65536 and 320 * WSTR <= 48 * TSTR
    DUMMY = (ZSLOT << 16) | 0xFFFF

    V = Regs("v", 1)
    vt0 = V.get(); vt1 = V.get(); vt2 = V.get()
    voffs = V.get(); vt3 = V.get()
    vA = V.get(4, 2)
    vbase, vrem, vb1, vr1 = vA, vA + 1, vA + 2, vA + 3
    vKT = vt1
    vpb = V.get(); vi12 = V.get(); vslot = V.get(); vfour = V.get(); vcidx = V.get(); vpa = V.get()
    vlo4 = V.get(); vKc = V.get(); vidx = V.get(); vka = V.get(); vkt = V.get()
    vacc = V.get(64, 2)
    vW = V.get(40, 2)
    vB = V.get(32, 2)
    vK = V.get(8, 2)
    vrec = vB; vha = vK
    vpf = V.get()
    nv = V.hi
    assert nv <= 168 and vt1 % 2 == 0 and voffs % 2 == 0, nv

    sRH = 4; sEA = 6; sSRC = 8; sDST = 10; sWR = 12; sW0 = 14; sW1 = 16; sDBG = 18
    sX = 20; sO = 24; sWS = 28
    sb = 32; sw = 33; sI0 = 34; sW12 = 35; sn = 36; s512 = 37; st0 = 38; st1 = 39; sM = 40; stot = 41; snonce = 43
    smask = 44; sovf = 60; smore = 62; spoll = 66; sfirst = 67
    spend = 4
    sq = (42, 64, 65)
    sHI = 68; sPH = 69; s4001 = 64; s800 = 65; sZ = 69
    ZM = 0x003fc000
    T = Stamps(o.diag, 70, 1)
    def stamp(i):
        if o.diag:
            a(f"s_memrealtime s[{70+2*i}:{71+2*i}]"); T.n = max(T.n, i + 1)
    ld = o.k1ld
    stamp(0)
    if o.diag: a('s_mov_b32 s98, 0')
    a(f"""
    s_cmp_ge_u32 s2, 256
    s_cbranch_scc1 F_end
    s_load_dwordx8 s[{sRH}:{sRH+7}], s[0:1], 8
    s_load_dwordx4 s[{sWR}:{sWR+3}], s[0:1], 40
    s_load_dwordx2 s[{sW1}:{sW1+1}], s[0:1], 56
    s_load_dwordx2 s[{sDBG}:{sDBG+1}], s[0:1], 80
    s_load_dwordx2 s[{sX}:{sX+1}], s[0:1], 0
    s_load_dwordx2 s[{sO}:{sO+1}], s[0:1], 72
    s_load_dwordx2 s[{sWS}:{sWS+1}], s[0:1], 88
    v_lshrrev_b32 v{vt0}, 6, v0
    s_mul_i32 s3, s2, {CHUNK*4}
    v_readfirstlane_b32 s{sw}, v{vt0}
    s_mov_b32 s{sWS+2}, {WS_END}
    s_mov_b32 s{sWS+3}, 0x20000
    s_mov_b32 s{sX+2}, 5120000
    s_mov_b32 s{sX+3}, 0x20000
    s_mov_b32 s{sO+2}, 5120000
    s_mov_b32 s{sO+3}, 0x20000
    s_cmp_ge_u32 s{sw}, 10
    s_cbranch_scc1 F_helper
    """)
    P = vacc
    pD = P; pS = P + 4; pE = P + 8; pR0 = P + 10; pR1 = P + 14; pH = P + 18; pRk = P + 22; pRec = P + 26
    pa0 = P + 42; pa1 = P + 43; pa2 = P + 44; p12 = P + 45; pT = P + 46
    pw0 = P + 50; pw1 = P + 51; pl = P + 52
    wraw = vW; wsc = vW + 16; wtmp = vW + 20; wad = vW + 28
    a(f"""
    v_lshl_add_u32 v{pa0}, v0, 4, s3
    v_and_b32 v{pl}, 63, v0
    s_cmp_lt_u32 s{sw}, 4
    s_cselect_b32 s{st0}, 0, 4
    s_sub_u32 s{st0}, s{sw}, s{st0}
    s_lshl_b32 s{st0}, s{st0}, 12
    v_lshl_add_u32 v{pw0}, v{pl}, 4, s{st0}
    v_lshrrev_b32 v{pw1}, 3, v{pl}
    s_lshl_b32 s{st0}, s{sw}, 5
    v_add_lshl_u32 v{pw1}, v{pw1}, s{st0}, 1
    s_mov_b32 s{sHI}, 0xffff0000
    v_lshrrev_b32 v{pa1}, 1, v{pa0}
    v_add_u32 v{pa2}, v{pa0}, v{pa1}
    v_mov_b32 v{p12}, 16
    v_cmp_gt_u32 vcc, {CHUNK//4}, v0
    s_mov_b64 exec, vcc
    s_waitcnt lgkmcnt(0)
    global_load_dwordx4 v[{pD}:{pD+3}], v{pa0}, s[{sDST}:{sDST+1}] {ld}
    """)
    a("s_barrier")
    def wloads():
        a(f"""
        s_cmp_lt_u32 s{sw}, 4
        s_cselect_b32 s{sW0}, s{sW0}, s{sW1}
        s_cselect_b32 s{sW0+1}, s{sW0+1}, s{sW1+1}
        """)
        for j in range(4):
            a(f"global_load_dwordx4 v[{wraw+4*j}:{wraw+4*j+3}], v{pw0}, s[{sW0}:{sW0+1}] offset:{1024*j}")
        for j in range(4):
            a(f"global_load_ushort v{wsc+j}, v{pw1}, s[{sWR}:{sWR+1}] offset:{16*j}")
    a(f"""
    global_load_dwordx4 v[{pS}:{pS+3}], v{pa0}, s[{sSRC}:{sSRC+1}] {ld}
    global_load_dwordx2 v[{pE}:{pE+1}], v{pa1}, s[{sEA}:{sEA+1}] {ld}
    global_load_dwordx3 v[{pR0}:{pR0+2}], v{pa2}, s[{sRH}:{sRH+1}] {ld}
    global_load_dwordx3 v[{pR1}:{pR1+2}], v{pa2}, s[{sRH}:{sRH+1}] offset:12 {ld}
    s_movk_i32 s{sPH}, {PHC}
    s_movk_i32 s{s4001}, 0x4100
    s_movk_i32 s{s800}, 0x800
    s_waitcnt vmcnt(4)
    """)
    if not o.fine: stamp(1)
    for i in range(4):
        a(f"v_lshlrev_b32_sdwa v{pH+i}, 2, v{pD+i} dst_sel:DWORD dst_unused:UNUSED_PAD src0_sel:DWORD src1_sel:BYTE_0")
        a(f"ds_add_rtn_u32 v{pRk+i}, v{pH+i}, v{p12} offset:{P_HIST}")
    for i in (1, 3):
        a(f"v_lshrrev_b32 v{pT}, 2, v{pD+i}\nv_and_or_b32 v{pD+i}, v{pT}, s{s800}, v{pD+i}")
    for i in range(4):
        a(f"v_mul_u32_u24_sdwa v{pD+i}, s{s4001}, v{pD+i} dst_sel:DWORD dst_unused:UNUSED_PAD src0_sel:DWORD src1_sel:BYTE_1")
    for i in range(4):
        a(f"v_and_b32 v{pD+i}, 0xfc00, v{pD+i}          ; (l&3)<<14 | (l>>2)<<10")
    a(f"""
    s_waitcnt lgkmcnt(0)
    s_barrier
    {'s_memrealtime s[72:73]' if o.fine == 2 else ''}
    s_barrier
    {'s_memrealtime s[74:75]' if o.fine == 2 else ''}
    s_load_dword s{snonce}, s[{sDBG}:{sDBG+1}], 0
    """)
    for i in range(4):
        a(f"ds_read_b32 v{pH+i}, v{pH+i} offset:{P_BASE}")
    a("s_waitcnt vmcnt(3)")
    if o.fine == 3: stamp(1)
    for i in range(4):
        k = pRec + 4 * i + 2
        a(f"v_mul_u32_u24 v{k}, s{sPH}, v{pS+i}")
        a(f"v_lshlrev_b32_sdwa v{k}, 6, v{k} dst_sel:DWORD dst_unused:UNUSED_PAD src0_sel:DWORD src1_sel:BYTE_3")
        a(f"v_or_b32 v{k}, v{k}, v{pD+i}")
        a(f"v_lshl_or_b32 v{k}, v{k}, 16, v{pS+i}")
    a(f"""
    s_waitcnt lgkmcnt(0)
    s_cmp_eq_u32 s{snonce}, 0
    s_cbranch_scc1 F_tagA
    F_tagA_ret:
    """)
    if o.fine == 3: stamp(2)
    for i in range(4):
        a(f"v_add_u32 v{pH+i}, v{pH+i}, v{pRk+i}")
    for i in range(4):
        a(f"v_mov_b32 v{pRec+4*i+3}, s{snonce}")
    def unpack(dst, src, hi):
        a(f"v_and_b32 v{dst}, s{sHI}, v{src}" if hi else f"v_lshlrev_b32 v{dst}, 16, v{src}")
    for i in range(4):
        if i == 0: a("s_waitcnt vmcnt(1)")
        if i == 2:
            a("s_waitcnt vmcnt(0)")
            if not o.fine: stamp(2)
        R = pR0 if i < 2 else pR1
        c = pRec + 4 * i
        unpack(pT, pE + i // 2, i & 1)
        for j in range(3):
            el = 3 * (i & 1) + j
            unpack(pT + 1 + j, R + el // 2, el & 1)
        for j in range(3):
            a(f"v_mul_f32 v{pT+1+j}, v{pT}, v{pT+1+j}")
        a(f"v_cvt_pk_bf16_f32 v{c}, v{pT}, v{pT+1}")
        a(f"v_cvt_pk_bf16_f32 v{c+1}, v{pT+2}, v{pT+3}")
        a(f"ds_write_b128 v{pH+i}, v[{c}:{c+3}]")
    if 'now' not in o.x and o.wl == 0:
        a(f"s_mov_b64 exec, -1")
        wloads()
    a(f"""
    s_mov_b64 exec, -1
    v_lshlrev_b32 v{pa1}, 4, v0
    s_mul_i32 s3, s2, {RECB}
    v_add_u32 v{pa0}, s3, v{pa1}
    v_add_u32 v{pT}, 10240, v{pa0}
    v_add_u32 v{pT+1}, 20480, v{pa0}
    v_add_u32 v{pT+2}, 30720, v{pa0}
    v_cmp_gt_u32 vcc, {(RECB - 30720)//16}, v0
    s_waitcnt lgkmcnt(0)
    s_barrier
    """)
    stamp(3)
    for j in range(4):
        a(f"ds_read_b128 v[{P+4*j}:{P+4*j+3}], v{pa1} offset:{P_ST+10240*j}")
    for j in range(4):
        if j == 3: a("s_mov_b64 exec, vcc")
        a(f"s_waitcnt lgkmcnt({3-j})\nglobal_store_dwordx4 v{pa0 if j == 0 else pT+j-1}, v[{P+4*j}:{P+4*j+3}], s[{sWS}:{sWS+1}] {o.k1st}")
    a("s_mov_b64 exec, -1")
    if o.fine == 1: stamp(1)
    if 'now' not in o.x and o.wl == 1: wloads()
    def wbuild():
        wwait = {0: 's_waitcnt vmcnt(%d)' % (1 if o.wl == 1 else 5), 1: 's_waitcnt vmcnt(%d)' % (1 if o.wl == 1 else 5), 2: ''}[o.wb]
        a(f"""
        s_cmp_eq_u32 s{sfirst}, 0
        s_cbranch_scc1 F_wdone
        s_cmp_ge_u32 s{sw}, {0 if 'now' in o.x else 10}
        s_cbranch_scc1 F_wdone
        v_bfe_u32 v{wad}, v0, 3, 3
        s_mul_i32 s3, s{sw}, {32*WSTR}
        s_add_u32 s3, s3, {L_W}
        v_mul_u32_u24 v{wad}, {WSTR}, v{wad}
        v_and_b32 v{wtmp}, 7, v0
        v_lshl_add_u32 v{wtmp}, v{wtmp}, 4, s3
        v_add_u32 v{wad}, v{wad}, v{wtmp}
        {wwait}
        """)
        for j in range(4):
            a(f"v_lshlrev_b32 v{wsc+j}, 16, v{wsc+j}")
            for i in range(8):
                unpack(wtmp + i, wraw + 4 * j + i // 2, i & 1)
            for i in range(8):
                a(f"v_mul_f32 v{wtmp+i}, v{wsc+j}, v{wtmp+i}")
            for i in range(4):
                a(f"v_cvt_pk_bf16_f32 v{wraw+4*j+i}, v{wtmp+2*i}, v{wtmp+2*i+1}")
            a(f"ds_write_b128 v{wad}, v[{wraw+4*j}:{wraw+4*j+3}] offset:{8*j*WSTR}")
        a("F_wdone:")
    a(f"""
    F_init:
    s_and_b32 s{sb}, s2, 7
    s_lshl_b32 s{sb}, s{sb}, 5
    s_lshr_b32 s3, s2, 3
    s_or_b32 s{sb}, s{sb}, s3                      ; bucket
    v_and_b32 v{vt1}, 15, v0
    v_lshrrev_b32 v{vt0}, 4, v0
    v_mad_u32_u24 v{vt0}, v{vt1}, 48, v{vt0}
    s_lshr_b32 s3, s{sb}, 2
    s_lshl_b32 s3, s3, 4
    s_bfe_u32 s{st0}, s{sb}, 0x10001
    s_lshl_b32 s{st0}, s{st0}, 10
    s_add_u32 s3, s3, s{st0}
    s_and_b32 s{st0}, s{sb}, 1
    s_lshl_b32 s{st0}, s{st0}, 3
    s_add_u32 s3, s3, s{st0}
    s_add_u32 s3, s3, {WS_OFF}
    v_lshl_add_u32 v{vpa}, v{vt0}, 11, s3
    v_mov_b32 v{voffs}, 0
    v_cmp_gt_u32 s[{smask}:{smask+1}], s{sWS+2}, v{vpa}
    s_mov_b64 exec, s[{smask}:{smask+1}]
    buffer_load_dwordx2 v[{voffs}:{voffs+1}], v{vpa}, s[{sWS}:{sWS+3}], 0 offen sc1
    s_mov_b64 exec, -1
    v_mul_u32_u24 v{vpb}, {RECB}, v{vt0}
    v_lshlrev_b32 v{vi12}, 4, v{vt1}
    v_lshlrev_b32 v{vslot}, 3, v0
    v_add_u32 v{vslot}, {L_COEF}, v{vslot}
    v_mov_b32 v{vfour}, 4
    s_movk_i32 s{s512}, 512
    s_mov_b32 s{sI0}, 0
    s_movk_i32 s{sW12}, 512
    s_mov_b32 s{sM}, 0xc000ffff
    s_mov_b32 s{sfirst}, 1
    v_and_b32 v{vt0}, 31, v0
    v_lshlrev_b32 v{vlo4}, 2, v{vt0}
    v_and_b32 v{vt2}, 3, v0                        ; c
    v_lshlrev_b32 v{vt0}, 17, v{vt2}
    v_sub_u32 v{vKc}, {L_COEF}, v{vt0}
    s_lshl_b32 s3, s{sw}, 4
    v_add_lshl_u32 v{vcidx}, v{vt1}, s3, 2
    s_mov_b32 s{sZ}, 0x{ZM:x}
    v_bfe_u32 v{vt0}, v0, 4, 1
    v_mul_u32_u24 v{vt0}, 0x5555, v{vt0}
    v_add_u32 v{vidx}, 0x8888, v{vt0}
    """)
    for i in range(64): a(f"v_mov_b32 v{vacc+i}, 0")
    a(f"""
    K2_batch:
    v_lshlrev_b32 v{vt0}, 2, v0
    v_mov_b32 v{vt1}, 0
    v_mov_b32 v{vt2}, 0
    ds_write_b32 v{vt0}, v{vt1} offset:{L_CNT}
    v_mov_b32 v{vt0}, {L_ZERO}
    ds_write_b64 v{vt0}, v[{vt1}:{vt2}]
    s_mov_b32 s{spoll}, 0x40000
    """)
    if o.wb == 0: wbuild()
    a(f"""
    s_waitcnt {'vmcnt(0) ' if o.b4v else ''}lgkmcnt(0)
    s_barrier
    """)
    stamp(4)
    if o.wb == 1: wbuild()
    a(f"""
    s_cmp_eq_u32 s{sfirst}, 0
    s_cbranch_scc1 F_polled
    s_mov_b64 exec, s[{smask}:{smask+1}]
    F_poll:
    s_waitcnt vmcnt(0)
    v_cmp_ne_u32 vcc, s{snonce}, v{voffs+1}
    s_and_b64 exec, exec, vcc
    s_cbranch_scc0 F_pollok
    buffer_load_dwordx2 v[{voffs}:{voffs+1}], v{vpa}, s[{sWS}:{sWS+3}], 0 offen sc1
    s_sub_u32 s{spoll}, s{spoll}, 1
    s_cbranch_scc0 F_poll
    s_endpgm
    F_pollok:
    s_mov_b64 exec, -1
    F_polled:
    """)
    stamp(5)
    a(f"""
    v_and_b32 v{vt0}, 0xffff, v{voffs}
    v_lshrrev_b32 v{vt1}, 16, v{voffs}
    v_add3_u32 v{vbase}, v{vpb}, v{vt0}, s{sI0}
    v_subrev_u32 v{vt1}, s{sI0}, v{vt1}
    v_min_i32 v{vrem}, s{sW12}, v{vt1}
    v_cmp_lt_i32 s[{smore}:{smore+1}], s{sW12}, v{vt1}
    s_mov_b64 s[{smask+10}:{smask+11}], 0
    s_cmp_ge_u32 s{sw}, 4
    s_cbranch_scc1 F_nor5
    """)
    def rload(r, b, rm, col):
        a(f"""
        v_add_u32_dpp v{vha+r}, v{b}, v{vi12} row_newbcast:{col} row_mask:0xf bank_mask:0xf
        v_sub_u32_dpp v{vt0}, v{rm}, v{vi12} row_newbcast:{col} row_mask:0xf bank_mask:0xf
        v_cmp_lt_i32 s[{smask+2*r}:{smask+2*r+1}], 0, v{vt0}
        s_or_b64 exec, s[{smask+2*r}:{smask+2*r+1}], 1
        buffer_load_dwordx4 v[{vrec+4*r}:{vrec+4*r+3}], v{vha+r}, s[{sWS}:{sWS+3}], 0 offen {o.recld}
        s_mov_b64 exec, -1
        """)
    rload(5, vbase, vrem, 5)
    a("F_nor5:")
    for r in range(5): rload(r, vbase, vrem, r)
    a(f"""
    v_subrev_u32 v{vr1}, 256, v{vrem}
    v_lshlrev_b32 v{vpa}, 16, v0
    v_cmp_lt_i32 s[{sovf}:{sovf+1}], 0, v{vr1}
    s_mov_b64 s[{smask+2*X0}:{smask+2*X0+1}], 0
    s_mov_b64 s[{smask+2*X1}:{smask+2*X1+1}], 0
    """)
    a(f"""
    s_bcnt1_i32_b64 s{st1}, s[{sovf}:{sovf+1}]
    s_cbranch_scc0 K2_x1_ret
    v_add_u32 v{vb1}, 256, v{vbase}
    v_mov_b32 v{vt2}, 60
    v_mbcnt_lo_u32_b32 v{vt0}, s{sovf}, 0
    v_mbcnt_hi_u32_b32 v{vt0}, s{sovf+1}, v{vt0}
    v_and_b32 v{vt1}, 3, v{vt0}
    v_and_b32 v{vt0}, 28, v{vt0}
    v_lshl_add_u32 v{vt0}, v{vt1}, 6, v{vt0}
    v_cndmask_b32 v{vt0}, v{vt2}, v{vt0}, s[{sovf}:{sovf+1}]
    ds_permute_b32 v{vb1}, v{vt0}, v{vb1}
    ds_permute_b32 v{vr1}, v{vt0}, v{vr1}
    s_waitcnt lgkmcnt(0)
    s_nop 1
    """)
    rload(X0, vb1, vr1, 0)
    a(f"""
    s_cmp_gt_u32 s{st1}, 4
    s_cbranch_scc1 K2_x1
    K2_x1_ret:
    s_cmp_lg_u64 s[{smore}:{smore+1}], 0
    s_cbranch_scc1 K2_setmore
    K2_setmore_ret:
    s_mul_i32 s{st0}, s{sw}, {CAPW*4}
    s_add_u32 s3, s{st0}, {L_KEYS}
    v_bfe_u32 v{vt0}, v0, 5, 1
    v_lshl_add_u32 v{vka}, v{vt0}, 4, s3
    v_lshl_add_u32 v{vkt}, v{vt0}, 5, s3
    v_and_b32 v{vt0}, 12, v0
    v_add_u32 v{vkt}, v{vkt}, v{vt0}
    """)
    if o.fine == 1: stamp(2)
    if o.mall == 2:
        a(f"s_cmp_eq_u32 s{sw}, 11\ns_cbranch_scc1 F_prefetch\nF_prefetched:")
    if o.wb == 2: wbuild()
    a(f"s_mov_b32 s{sfirst}, 0")
    for r in range(NR0 + 1):
        a(f"s_mov_b64 s[{spend+2*r}:{spend+2*r+1}], s[{smask+2*r}:{smask+2*r+1}]")
    def pass1(r):
        k = vrec + 4 * r + 2
        a(f"""
        s_mov_b64 exec, s[{spend+2*r}:{spend+2*r+1}]
        v_and_or_b32 v{vt0}, v{k}, s{sZ}, v{k+1}
        v_cmpx_eq_u32 vcc, s{snonce}, v{vt0}
        v_bfe_u32 v{vha+r}, v{k}, 20, 10
        v_add_u32 v{k+1}, {(r*NT) << 16}, v{vpa}
        s_andn2_b64 s[{spend+2*r}:{spend+2*r+1}], s[{spend+2*r}:{spend+2*r+1}], exec
        v_and_or_b32 v{k}, v{k}, s{sM}, v{k+1}
        ds_add_rtn_u32 v{k+1}, v{vha+r}, v{vfour} offset:{L_CNT}
        ds_write_b64 v{vslot}, v[{k-2}:{k-1}] offset:{r*NT*8}
        """)
    a("F_sweep:")
    for r in range(5):
        a(f"s_waitcnt vmcnt({4-r})")
        pass1(r)
        if r == 0: pass1(5)
    pass1(X0)
    a(f"s_or_b64 vcc, s[{spend}:{spend+1}], s[{spend+2}:{spend+3}]")
    for r in range(2, NR0 + 1):
        a(f"s_or_b64 vcc, vcc, s[{spend+2*r}:{spend+2*r+1}]")
    a(f"""
    s_cbranch_scc1 F_retry
    s_mov_b64 exec, -1
    s_waitcnt lgkmcnt(0)
    s_barrier
    """)
    stamp(6)
    if o.mall == 3:
        a(f"s_cmp_eq_u32 s{sw}, 11\ns_cbranch_scc1 F_prefetch\nF_prefetched:")
    a(f"""
    ds_read_b32 v{vt0}, v{vcidx} offset:{L_CNT}
    v_and_b32 v{vt1}, 63, v0
    v_mov_b32 v{vt3}, 0x{DUMMY:x}
    s_waitcnt lgkmcnt(0)
    v_mov_b32 v{vt2}, v{vt0}
    """)
    for sh in (1, 2, 4, 8):
        a(f"s_nop 1\nv_add_u32_dpp v{vt2}, v{vt2}, v{vt2} row_shr:{sh} row_mask:0xf bank_mask:0xf")
    a(f"""
    v_subrev_u32 v{vt0}, s{st0}, v{vt0}
    v_readlane_b32 s{stot}, v{vt2}, 15
    v_sub_u32 v{vt2}, v{vt2}, v{vt0}
    ds_write_b32 v{vcidx}, v{vt2} offset:{L_BASE}
    s_cmp_gt_u32 s{stot}, {(CAPW-64)*4}
    s_cbranch_scc1 K2_setslow
    s_add_u32 s{st1}, s{stot}, s{st0}
    v_lshl_add_u32 v{vt1}, v{vt1}, 2, s{st1}
    ds_write_b32 v{vt1}, v{vt3} offset:{L_KEYS}
    K2_setslow_ret:
    v_mov_b32 v{vt0}, {L_FLAG}
    s_waitcnt lgkmcnt(0)
    s_barrier
    ds_read_b64 v[{vt1}:{vt1+1}], v{vt0}
    """)
    for r in range(NR0 + 1):
        a(f"s_mov_b64 exec, s[{smask+2*r}:{smask+2*r+1}]\nds_read_b32 v{vha+r}, v{vha+r} offset:{L_BASE}")
    a(f"""
    s_mov_b64 exec, -1
    s_waitcnt lgkmcnt(0)
    v_readfirstlane_b32 s{st1}, v{vt1}
    v_readfirstlane_b32 s{smore}, v{vt1+1}
    s_cmp_lg_u32 s{st1}, 0
    s_cbranch_scc1 K2_goslow
    """)
    for r in range(NR0 + 1):
        a(f"""
        s_mov_b64 exec, s[{smask+2*r}:{smask+2*r+1}]
        v_add_u32 v{vha+r}, v{vha+r}, v{vrec+4*r+3}
        ds_write_b32 v{vha+r}, v{vrec+4*r+2} offset:{L_KEYS}
        """)
    a(f"""
    s_mov_b64 exec, -1
    s_cmp_lg_u64 s[{smask+2*X1}:{smask+2*X1+1}], 0
    s_cbranch_scc1 K2_x1b
    K2_x1b_ret:
    s_waitcnt lgkmcnt(0)
    s_barrier
    """)
    stamp(7); T.clk(a, 0)
    def keys_read():
        a(f"""
        ds_read_b128 v[{vK}:{vK+3}], v{vka}
        ds_read_b128 v[{vK+4}:{vK+7}], v{vka} offset:32
        ds_read2_b32 v[{vKT}:{vKT+1}], v{vkt} offset0:0 offset1:4
        v_add_u32 v{vka}, 64, v{vka}
        v_add_u32 v{vkt}, 64, v{vkt}
        """)
    def addr_calc():
        for r in range(8):
            a(f"v_mad_u32_u16 v{vK+r}, v{vK+r}, s{s512}, v{vlo4}")
        for r in range(2):
            a(f"v_mad_u32_u16 v{vKT+r}, v{vKT+r}, 8, v{vKc} op_sel:[1,0,0,0]")
    def row_loads(r0, r1):
        for r in range(r0, r1):
            for q in range(4):
                a(f"buffer_load_dword v{vB+8*q+r}, v{vK+r}, s[{sX}:{sX+3}], 0 offen offset:{128*q}")
    a(f"""
    s_cmp_eq_u32 s{stot}, 0
    s_cbranch_scc1 F_wfrag
    """)
    keys_read()
    a(f"s_sub_i32 s{sn}, s{stot}, 64")
    pth = [int(x) for x in o.pth.split(",")] if o.pth else []
    if pth:
        for i in range(3):
            a(f"s_mul_i32 s{sq[i]}, s{stot}, {pth[i]}\ns_lshr_b32 s{sq[i]}, s{sq[i]}, 4")
        a("s_setprio 3")
    a("s_waitcnt lgkmcnt(0)")
    addr_calc()
    row_loads(0, 8)
    a(f"""
    F_wfrag:
    v_bfe_u32 v{vA}, v0, 4, 2                      ; g
    v_bfe_u32 v{vA+1}, v0, 2, 2                    ; r
    v_lshl_add_u32 v{vA+2}, v{vA}, 3, v{vA+1}      ; 8g + r
    v_bfe_u32 v{vA+1}, v0, 2, 1
    v_lshl_add_u32 v{vA}, v{vA}, 2, v{vA+1}
    v_bfe_u32 v{vA+1}, v0, 3, 1
    v_lshl_add_u32 v{vA}, v{vA+1}, 6, v{vA}        ; 4g + (r&1) + 64(r>>1)
    s_and_b32 s3, s{sw}, 3
    s_lshl_b32 s3, s3, 5
    s_add_u32 s3, s3, {L_W}
    v_and_b32 v{vA+1}, 3, v0
    v_lshl_add_u32 v{vA+1}, v{vA+1}, 3, s3
    s_movk_i32 s3, {WSTR}
    v_mad_u32_u24 v{vA}, v{vA}, s3, v{vA+1}
    v_mad_u32_u24 v{vA+2}, v{vA+2}, s3, v{vA+1}
    """)
    for f in range(10):
        for tt in range(2):
            if f < 8: ad, off = vA, (128 * (f >> 2) + 16 * (f & 3) + 2 * tt) * WSTR
            else: ad, off = vA + 2, (256 + 32 * (f - 8) + 4 * tt) * WSTR
            a(f"ds_read_b64_tr_b16 v[{vW+4*f+2*tt}:{vW+4*f+2*tt+1}], v{ad} offset:{off}")
    a(f"""
    v_mov_b32 v{vt0}, {L_FLAG+8}
    s_mov_b64 exec, 1
    s_waitcnt lgkmcnt(0)
    ds_add_u32 v{vt0}, v{vfour}
    s_mov_b64 exec, -1
    s_cmp_eq_u32 s{stot}, 0
    s_cbranch_scc1 K2_done
    """)
    a("K2_loop:")
    a(f"ds_read_b64_tr_b16 v[{vA}:{vA+1}], v{vKT}\nds_read_b64_tr_b16 v[{vA+2}:{vA+3}], v{vKT+1}")
    keys_read()
    if pth:
        a(f"""
        s_cmp_ge_i32 s{sn}, s{sq[0]}
        s_cbranch_scc1 K2_prio
        s_setprio 2
        s_cmp_ge_i32 s{sn}, s{sq[1]}
        s_cbranch_scc1 K2_prio
        s_setprio 1
        s_cmp_ge_i32 s{sn}, s{sq[2]}
        s_cbranch_scc1 K2_prio
        s_setprio 0
        K2_prio:
        """)
    a("s_waitcnt lgkmcnt(0)")
    addr_calc()
    a(f"s_cmp_le_i32 s{sn}, 0\ns_waitcnt vmcnt(0)")
    for q in range(4):
        a(f"v_smfmac_f32_32x32x32_bf16 v[{vacc+16*q}:{vacc+16*q+15}], v[{vA}:{vA+3}], v[{vB+8*q}:{vB+8*q+7}], v{vidx}")
    a("s_cbranch_scc1 K2_done")
    row_loads(0, 4)
    a(f"s_sub_i32 s{sn}, s{sn}, 64\ns_cmp_le_i32 s{sn}, -32\ns_cbranch_scc1 K2_loop")
    row_loads(4, 8)
    a("s_branch K2_loop")

    def tagpoll(name, ret):
        a(f"""
        {name}:
        s_mov_b32 s{spoll}, 0x40000
        v_mov_b32 v{vt0}, 0
        {name}_l:
        global_load_dword v{vt1}, v{vt0}, s[{sDBG}:{sDBG+1}] sc1
        s_waitcnt vmcnt(0)
        v_readfirstlane_b32 s{snonce}, v{vt1}
        s_cmp_lg_u32 s{snonce}, 0
        s_cbranch_scc1 {ret}
        s_sub_u32 s{spoll}, s{spoll}, 1
        s_cbranch_scc0 {name}_l
        s_endpgm
        """)
    tagpoll("F_tagA", "F_tagA_ret")
    h = vacc; hp = vW
    def prefetch():
        nl2 = o.pfl2
        a(f"v_and_b32 v{vt0}, 63, v0")
        if nl2:
            a(f"s_lshr_b32 s3, s2, 3\ns_lshl_b32 s3, s3, 13\nv_lshl_add_u32 v{vt1}, v{vt0}, 7, s3")
            for i in range(nl2):
                a(f"buffer_load_dword v{vpf}, v{vt1}, s[{sX}:{sX+3}], 0 offen\nv_add_u32 v{vt1}, {32*8192}, v{vt1}")
        rest = 40000 - 2048 * nl2
        per = -(-rest // 256)
        a(f"s_mul_i32 s3, s2, {per*128}\ns_add_u32 s3, s3, {nl2*32*8192}\nv_lshl_add_u32 v{vt1}, v{vt0}, 7, s3")
        for i in range(0, per, 64):
            n = min(64, per - i)
            if n < 64: a(f"v_cmp_gt_u32 vcc, {n}, v{vt0}\ns_mov_b64 exec, vcc")
            a(f"buffer_load_dword v{vpf}, v{vt1}, s[{sX}:{sX+3}], 0 offen\nv_add_u32 v{vt1}, 8192, v{vt1}")
        a("s_mov_b64 exec, -1")
    a(f"""
    F_helper:
    s_cmp_eq_u32 s{sw}, 10
    s_cbranch_scc1 F_scan
    s_cmp_lg_u32 s2, 0
    s_cbranch_scc1 F_h1
    s_memrealtime s[{smask}:{smask+1}]
    v_mov_b32 v{vt0}, 0
    s_waitcnt lgkmcnt(0)
    s_mul_i32 s3, s{smask}, 0x9e3779b1
    s_andn2_b32 s3, s3, 0x{ZM:x}
    s_or_b32 s3, s3, 1
    v_mov_b32 v{vt1}, s3
    global_store_dword v{vt0}, v{vt1}, s[{sDBG}:{sDBG+1}] sc1
    F_h1:
    s_waitcnt lgkmcnt(0)
    """)
    if o.wtouch:
        a(f"""
        v_and_b32 v{vt0}, 63, v0
        v_lshlrev_b32 v{vt0}, 7, v{vt0}
        s_lshr_b32 s3, s2, 3
        s_lshl_b32 s{st0}, s3, 9
        v_add_u32 v{vt1}, s{st0}, v{vt0}
        s_mul_i32 s{st0}, s3, 768
        v_add_u32 v{vt2}, s{st0}, v{vt0}
        s_mov_b64 exec, 15
        global_load_dword v{vpf}, v{vt1}, s[{sW0}:{sW0+1}]
        s_mov_b64 exec, 63
        global_load_dword v{vpf}, v{vt2}, s[{sW1}:{sW1+1}]
        s_mov_b64 exec, 31
        global_load_dword v{vpf}, v{vt0}, s[{sWR}:{sWR+1}]
        s_mov_b64 exec, -1
        """)
    a(f"""
    s_barrier
    s_barrier
    """)
    a(f"""
    s_barrier
    s_load_dword s{snonce}, s[{sDBG}:{sDBG+1}], 0
    """)
    if o.mall == 1: prefetch()
    a(f"""
    s_barrier
    s_waitcnt lgkmcnt(0)
    s_cmp_lg_u32 s{snonce}, 0
    s_cbranch_scc1 F_init
    """)
    tagpoll("F_tagC", "F_init")
    a(f"""
    F_scan:
    v_and_b32 v{h}, 63, v0
    v_lshlrev_b32 v{h+1}, 4, v{h}
    v_mov_b32 v{h+4}, 0
    v_mov_b32 v{h+5}, 0
    v_mov_b32 v{h+6}, 0
    v_mov_b32 v{h+7}, 0
    ds_write_b128 v{h+1}, v[{h+4}:{h+7}] offset:{P_HIST}
    s_lshl_b32 s3, s2, 11
    s_add_u32 s3, s3, {WS_OFF}
    v_lshl_add_u32 v{hp+8}, v{h}, 4, s3
    s_waitcnt lgkmcnt(0)
    s_barrier
    s_barrier
    ds_read_b128 v[{h+4}:{h+7}], v{h+1} offset:{P_HIST}
    s_waitcnt lgkmcnt(0)
    v_add_u32 v{h+9}, v{h+4}, v{h+5}
    v_add_u32 v{h+10}, v{h+9}, v{h+6}
    v_add_u32 v{h+11}, v{h+10}, v{h+7}
    v_mov_b32 v{h+12}, v{h+11}
    """)
    dpp_scan(a, h + 12)
    a(f"""
    v_sub_u32 v{h+16}, v{h+12}, v{h+11}
    v_add_u32 v{h+20}, {P_ST}, v{h+16}
    v_add_u32 v{h+21}, v{h+20}, v{h+4}
    v_add_u32 v{h+22}, v{h+20}, v{h+9}
    v_add_u32 v{h+23}, v{h+20}, v{h+10}
    ds_write_b128 v{h+1}, v[{h+20}:{h+23}] offset:{P_BASE}
    s_waitcnt lgkmcnt(0)
    s_barrier
    s_load_dword s{snonce}, s[{sDBG}:{sDBG+1}], 0
    v_add_u32 v{h+17}, v{h+16}, v{h+4}
    v_add_u32 v{h+18}, v{h+16}, v{h+9}
    v_add_u32 v{h+19}, v{h+16}, v{h+10}
    v_lshl_or_b32 v{hp}, v{h+4}, 16, v{h+16}
    v_lshl_or_b32 v{hp+2}, v{h+5}, 16, v{h+17}
    v_lshl_or_b32 v{hp+4}, v{h+6}, 16, v{h+18}
    v_lshl_or_b32 v{hp+6}, v{h+7}, 16, v{h+19}
    s_waitcnt lgkmcnt(0)
    s_cmp_eq_u32 s{snonce}, 0
    s_cbranch_scc1 F_tagD
    F_tagD_ret:
    s_nop 1
    v_mov_b32 v{hp+1}, s{snonce}
    v_mov_b32 v{hp+3}, s{snonce}
    v_mov_b32 v{hp+5}, s{snonce}
    v_mov_b32 v{hp+7}, s{snonce}
    global_store_dwordx4 v{hp+8}, v[{hp}:{hp+3}], s[{sWS}:{sWS+1}] sc1
    global_store_dwordx4 v{hp+8}, v[{hp+4}:{hp+7}], s[{sWS}:{sWS+1}] offset:1024 sc1
    s_barrier
    s_branch F_init
    """)
    tagpoll("F_tagD", "F_tagD_ret")
    if o.mall >= 2:
        a("F_prefetch:")
        prefetch()
        a("s_branch F_prefetched")
    a("F_retry:")
    for r in range(NR0 + 1):
        a(f"""
        s_mov_b64 exec, s[{spend+2*r}:{spend+2*r+1}]
        s_cbranch_execz F_retry{r}
        buffer_load_dwordx4 v[{vrec+4*r}:{vrec+4*r+3}], v{vha+r}, s[{sWS}:{sWS+3}], 0 offen sc1
        F_retry{r}:
        """)
    if o.diag: a("s_add_u32 s98, s98, 1")
    a(f"""
    s_waitcnt vmcnt(0)
    s_sub_u32 s{spoll}, s{spoll}, 1
    s_cbranch_scc0 F_sweep
    s_endpgm
    """)
    a("K2_x1:")
    rload(X1, vb1, vr1, 1)
    a(f"s_mov_b64 s[{spend+2*X1}:{spend+2*X1+1}], s[{smask+2*X1}:{smask+2*X1+1}]\nK2_x1_l:\ns_waitcnt vmcnt(0)")
    pass1(X1)
    a(f"""
    s_mov_b64 exec, s[{spend+2*X1}:{spend+2*X1+1}]
    s_cbranch_execz K2_x1_ok
    buffer_load_dwordx4 v[{vrec+4*X1}:{vrec+4*X1+3}], v{vha+X1}, s[{sWS}:{sWS+3}], 0 offen sc1
    s_sub_u32 s{spoll}, s{spoll}, 1
    s_cbranch_scc0 K2_x1_l
    s_endpgm
    K2_x1_ok:
    """)
    a(f"""
    s_mov_b64 exec, -1
    s_cmp_le_u32 s{st1}, 8
    s_cbranch_scc1 K2_x1_ret
    v_mov_b32 v{vt0}, {L_FLAG}
    ds_write_b32 v{vt0}, v{vfour}
    s_branch K2_x1_ret
    K2_setmore:
    v_mov_b32 v{vt0}, {L_FLAG}
    ds_write_b32 v{vt0}, v{vfour} offset:4
    s_branch K2_setmore_ret
    K2_setslow:
    v_mov_b32 v{vt0}, {L_FLAG}
    ds_write_b32 v{vt0}, v{vfour}
    s_branch K2_setslow_ret
    K2_goslow:
    s_cmp_eq_u32 s{sW12}, 16
    s_cbranch_scc1 F_end
    s_movk_i32 s{sW12}, 16
    s_waitcnt vmcnt(0) lgkmcnt(0)
    s_barrier
    s_branch K2_batch
    K2_x1b:
    s_mov_b64 exec, s[{smask+2*X1}:{smask+2*X1+1}]
    ds_read_b32 v{vha+X1}, v{vha+X1} offset:{L_BASE}
    s_waitcnt lgkmcnt(0)
    v_add_u32 v{vha+X1}, v{vha+X1}, v{vrec+4*X1+3}
    ds_write_b32 v{vha+X1}, v{vrec+4*X1+2} offset:{L_KEYS}
    s_mov_b64 exec, -1
    s_branch K2_x1b_ret
    K2_next:
    s_add_u32 s{sI0}, s{sI0}, s{sW12}
    s_nop 7
    s_nop 7
    s_waitcnt vmcnt(0) lgkmcnt(0)
    s_barrier
    s_branch K2_batch
    """)

    vP = vB; vD = vB + 16
    vwa = vK; vwb = vK + 1; vra = vK + 2; voa = vK + 3
    vF = vacc
    a(f"""
    K2_done:
    s_cmp_lg_u32 s{smore}, 0
    s_cbranch_scc1 K2_next
    s_setprio 0
    """)
    stamp(8); T.clk(a, 1)
    a(f"""
    K2_guard:
    s_sub_u32 s{spoll}, s{spoll}, 1
    s_cbranch_scc1 F_end
    v_mov_b32 v{vt2}, {L_FLAG+8}
    ds_read_b32 v{vt2}, v{vt2}
    v_and_b32 v{vt0}, 15, v0
    v_bfe_u32 v{vt1}, v0, 4, 2
    s_lshr_b32 s{st0}, s{sw}, 2
    s_mul_i32 s3, s{st0}, {16*TSTR}
    s_add_u32 s3, s3, {L_T}
    v_mul_u32_u24 v{vra}, {TSTR}, v{vt0}
    v_lshl_add_u32 v{vra}, v{vt1}, 4, v{vra}
    v_add_u32 v{vra}, s3, v{vra}
    s_mul_i32 s3, s{st0}, {16*OSTR}
    s_and_b32 s{st1}, s{sw}, 3
    s_lshl_b32 s{st1}, s{st1}, 5
    s_add_u32 s3, s3, s{st1}
    v_mul_u32_u24 v{voa}, {OSTR}, v{vt0}
    v_lshl_add_u32 v{voa}, v{vt1}, 3, v{voa}
    v_add_u32 v{voa}, s3, v{voa}
    s_mul_i32 s3, s{sw}, {4*TSTR}
    s_add_u32 s3, s3, {L_T}
    v_bfe_u32 v{vt0}, v0, 5, 1
    v_mul_u32_u24 v{vt0}, {TSTR}, v{vt0}
    v_add3_u32 v{vwb}, v{vt0}, v{vlo4}, s3
    v_add_u32 v{vwa}, v{vwb}, v{vlo4}
    s_waitcnt lgkmcnt(0)
    v_readfirstlane_b32 s3, v{vt2}
    s_cmp_lg_u32 s3, 48
    s_cbranch_scc1 K2_guard
    """)
    for cp in range(2):
        R = lambda p, q, pi: vacc + 16 * q + 8 * pi + 4 * cp + p
        for pi in range(2):
            a(f"v_add_f32 v{R(1,1,pi)}, v{R(1,1,pi)}, v{R(2,2,pi)}")
            a(f"v_sub_f32 v{R(2,3,pi)}, v{R(2,3,pi)}, v{R(3,2,pi)}")
            a(f"v_sub_f32 v{R(3,1,pi)}, v{R(3,1,pi)}, v{R(1,3,pi)}")
            a(f"v_sub_f32 v{R(1,2,pi)}, v{R(1,2,pi)}, v{R(2,1,pi)}")
            a(f"v_add_f32 v{R(1,1,pi)}, v{R(1,1,pi)}, v{R(3,3,pi)}")
        cv = lambda d, p, q: a(f"v_cvt_pk_bf16_f32 v{d}, v{R(p,q,0)}, v{R(p,q,1)}")
        off = 2 * cp * TSTR
        cv(vP, 0, 0); cv(vP + 1, 1, 1)
        a(f"ds_write_b64 v{vwa}, v[{vP}:{vP+1}] offset:{off}")
        for oo, (p4, q4) in ((1, (2, 3)), (2, (3, 1)), (3, (1, 2))):
            d = vP + 4 * oo
            cv(d, oo, 0); cv(d + 1, 0, oo); cv(d + 2, p4, q4)
            a(f"ds_write_b64 v{vwa}, v[{d}:{d+1}] offset:{off + 256 + 384*(oo-1)}")
            a(f"ds_write_b32 v{vwb}, v{d+2} offset:{off + 512 + 384*(oo-1)}")
    a(f"""
    s_waitcnt vmcnt(0) lgkmcnt(0)
    s_barrier
    """)
    stamp(9)
    frs = [(oo, ks) for ks in range(6) for oo in range(4) if not (oo == 0 and ks >= 4)]
    NF = len(frs); NB = 12
    def rd(i):
        oo, ks = frs[i]
        off = 64 * ks + (0 if oo == 0 else 256 + 384 * (oo - 1))
        a(f"ds_read_b128 v[{vF+4*(i%16)}:{vF+4*(i%16)+3}], v{vra} offset:{off}")
    for i in range(NB): rd(i)
    for i in range(NF):
        oo, ks = frs[i]
        wreg = vW + 4 * (ks if oo == 0 else 4 + ks)
        a(f"s_waitcnt lgkmcnt({min(NB-1, NF-1-i)})")
        c = "0" if ks == 0 else f"v[{vD+4*oo}:{vD+4*oo+3}]"
        a(f"v_mfma_f32_16x16x32_bf16 v[{vD+4*oo}:{vD+4*oo+3}], v[{wreg}:{wreg+3}], v[{vF+4*(i%16)}:{vF+4*(i%16)+3}], {c}")
        if i + NB < NF: rd(i + NB)
    a(f"""
    s_cmp_lt_u32 s{sw}, 8
    s_cbranch_scc1 K2_gate
    s_nop 7
    """)
    for r in range(16):
        a(f"v_add_f32_dpp v{vD+r}, v{vD+r}, v{vD+r} row_ror:8 row_mask:0xf bank_mask:0xf")
    a("K2_gate:")
    for r in range(4):
        a(f"v_mul_f32 v{vP+r}, 0xbfb8aa3b, v{vD+r}")
    for r in range(4):
        a(f"v_exp_f32 v{vP+r}, v{vP+r}")
    for r in range(4):
        a(f"v_add_f32 v{vP+r}, 1.0, v{vP+r}")
    for r in range(4):
        a(f"v_rcp_f32 v{vP+r}, v{vP+r}")
    a(f"v_cvt_pk_bf16_f32 v{vP+4}, v{vD}, v{vD+1}\nv_cvt_pk_bf16_f32 v{vP+5}, v{vD+2}, v{vD+3}")
    a(f"ds_write_b64 v{voa}, v[{vP+4}:{vP+5}] offset:{L_OUT}")
    for oo in range(1, 4):
        for r in range(4):
            a(f"v_mul_f32 v{vD+4*oo+r}, v{vP+r}, v{vD+4*oo+r}")
        a(f"v_cvt_pk_bf16_f32 v{vD+4*oo}, v{vD+4*oo}, v{vD+4*oo+1}\nv_cvt_pk_bf16_f32 v{vD+4*oo+1}, v{vD+4*oo+2}, v{vD+4*oo+3}")
        a(f"ds_write_b64 v{voa}, v[{vD+4*oo}:{vD+4*oo+1}] offset:{L_OUT + 128*oo}")
    a(f"""
    v_lshrrev_b32 v{vt0}, 5, v0                    ; row 0..23
    v_mul_u32_u24 v{vt1}, {OSTR}, v{vt0}
    v_lshl_add_u32 v{vt1}, v{vlo4}, 2, v{vt1}
    s_lshl_b32 s3, s{sb}, 9
    v_lshl_add_u32 v{vt2}, v{vlo4}, 2, s3
    v_lshl_add_u32 v{vt2}, v{vt0}, 17, v{vt2}
    v_add_u32 v{vt3}, {24<<17}, v{vt2}
    s_waitcnt lgkmcnt(0)
    s_barrier
    """)
    stamp(10)
    a(f"""
    ds_read_b128 v[{vF}:{vF+3}], v{vt1} offset:{L_OUT}
    ds_read_b128 v[{vF+4}:{vF+7}], v{vt1} offset:{L_OUT + 24*OSTR}
    s_cmp_ge_u32 s{sw}, 8
    s_waitcnt lgkmcnt(1)
    buffer_store_dwordx4 v[{vF}:{vF+3}], v{vt2}, s[{sO}:{sO+3}], 0 offen {o.k2st}
    s_cbranch_scc1 K2_fin
    s_waitcnt lgkmcnt(0)
    buffer_store_dwordx4 v[{vF+4}:{vF+7}], v{vt3}, s[{sO}:{sO+3}], 0 offen {o.k2st}
    K2_fin:
    """)
    if o.diag:
        a("s_waitcnt vmcnt(0)")
        stamp(11)
        T.dump(a, sWS, vt0, "k2", wave_s=sw)
        a(f"v_mov_b32 v{vt0+1}, s98\nglobal_store_dword v{vt0}, v{vt0+1}, s[{sWS}:{sWS+1}] offset:56")
    a("F_end:\ns_endpgm")
    return a.text(), nv, 100, lds

def main():
    ap = argparse.ArgumentParser()
    ap.add_argument("-o", default=f"cdna_kernels/{NAME}.s")
    ap.add_argument("--nph", type=int, default=16)
    ap.add_argument("--k1ld", default="")
    ap.add_argument("--k2st", default="nt")
    ap.add_argument("--diag", action="store_true")
    ap.add_argument("--mall", type=int, default=3)
    ap.add_argument("--pfl2", type=int, default=0)
    ap.add_argument("--pth", default="12,8,4")
    ap.add_argument("--fine", type=int, default=0)
    ap.add_argument("--recld", default="sc1")
    ap.add_argument("--wtouch", type=int, default=1)
    ap.add_argument("--k1st", default="sc1")
    ap.add_argument("--wl", type=int, default=0, help="weight loads: 0 before the key writes, 1 after the record stores")
    ap.add_argument("--wb", type=int, default=2, help="weight build: 0 before B4, 1 after B4, 2 after the record loads")
    ap.add_argument("--b4v", type=int, default=1)
    ap.add_argument("--x", default="")
    o = ap.parse_args()
    k, nv, ns, lds = gen(o)
    if 'nonce' in o.x:
        k = re.sub(r"s_load_dword s43, s\[18:19\], 0", "s_mov_b32 s43, 0x77000123", k)
    hdr = open(f"cdna_kernels/{NAME}.s.ref").read().split("; Override launch")[0]
    kn = f"{NAME}_kernel"
    s = hdr
    if o.diag: s += "; diag: n1=0 n2=12 nw=12 m0=7 fused=1\n"
    s += f"; @launch grid=(256,1,1) block=(768,1,1) lds={lds}\n"
    s += '.amdgcn_target "amdgcn-amd-amdhsa--gfx950"\n.text\n'
    s += f".globl {kn}\n.p2align 8\n.type {kn},@function\n{kn}:\n{k}"
    s += '.section .rodata,"a"\n' + desc(kn, nv, ns)
    open(o.o, "w").write(s)
    print(f"wrote {o.o}: vgpr {nv} lds {lds}")

if __name__ == "__main__":
    main()
```

```python
import sys, argparse, re

NAME = "standalone__tensor_product_equiv_equiformer__graph"
NPROD = 256
CHUNK = 2500
RECB = 40064
WS_OFF = NPROD * RECB
WS_END = WS_OFF + NPROD * 2048
WS_TS = 0x1000000

class Asm:
    def __init__(self):
        self.lines = []
    def __call__(self, s):
        for l in s.strip("\n").split("\n"):
            l = l.strip()
            if not l:
                continue
            self.lines.append(l if (l.endswith(":") or l.startswith(".")) else "    " + l)
    def text(self):
        return "\n".join(self.lines) + "\n"

class Regs:
    def __init__(self, start=0):
        self.n = start
    def get(self, cnt=1, align=1):
        self.n = (self.n + align - 1) // align * align
        r = self.n; self.n += cnt
        return r

def dpp_scan(a, v, lanes=64):
    for sh in (1, 2, 4, 8):
        a(f"s_nop 1\nv_add_u32_dpp v{v}, v{v}, v{v} row_shr:{sh} row_mask:0xf bank_mask:0xf")
    if lanes == 64:
        a(f"s_nop 1\nv_add_u32_dpp v{v}, v{v}, v{v} row_bcast:15 row_mask:0xa bank_mask:0xf")
        a(f"s_nop 1\nv_add_u32_dpp v{v}, v{v}, v{v} row_bcast:31 row_mask:0xc bank_mask:0xf")

SD = "dst_sel:DWORD dst_unused:UNUSED_PAD src0_sel:DWORD src1_sel:"

def gen(o):
    a = Asm()
    NPH = 16
    PHC = (NPH << 24) // 10000
    assert (9999 * PHC) >> 24 == NPH - 1 and PHC < 32768
    NT = 768
    NR0 = 6; NR = NR0 + 2; X0 = NR0; X1 = NR0 + 1
    BINE = 52; BINCAP = 48; WREG = 16 * BINE * 4
    TSTR = 1440; OSTR = 528; WSTR = 160
    L_CNT = 0; L_FLAG = 1024; L_KEYS = L_FLAG + 64
    L_COEF = L_KEYS + 12 * WREG
    ZSLOT = NR * NT
    L_ZERO = L_COEF + ZSLOT * 8
    L_T = L_ZERO + 16
    L_END = L_T + 48 * TSTR
    L_W = L_T
    P_ST = L_COEF
    P_HIST = L_KEYS + 8192; P_BASE = P_HIST + 1024
    lds = L_END
    assert 4 * WREG >= 16 * OSTR and 16 * BINCAP + 64 <= 16 * BINE
    assert lds <= 163840 and lds <= 131072 + L_COEF and L_KEYS % 16 == 0 and L_T % 16 == 0 and L_COEF % 16 == 0
    assert P_ST + RECB <= L_ZERO and 320 * WSTR <= 48 * TSTR
    DUMMY = (ZSLOT << 16) | 0xFFFF
    ZM = 0x003fc000

    V = Regs(1)
    vt0 = V.get(); vt1 = V.get(); vt2 = V.get()
    voffs = V.get(); vt3 = V.get()
    vA = V.get(4, 2)
    vbase, vrem, vb1, vr1 = vA, vA + 1, vA + 2, vA + 3
    vKT = vt1
    vpb = V.get(); vi16 = V.get(); vslot = V.get(); vfour = V.get(); vcidx = V.get(); vpa = V.get()
    vlo4 = V.get(); vKc = V.get(); vidx = V.get(); vka = V.get(); vkt = V.get()
    vacc = V.get(64, 2)
    vW = V.get(40, 2)
    vB = V.get(32, 2)
    vK = V.get(8, 2)
    vpf = V.get(); vpg = V.get()
    vrec = vB; vha = vK
    vra = vpb; voa = vi16; vwa = vslot; vwb = vcidx; vsr = vpa; vso = vt3
    nv = V.n
    assert nv <= 168 and vt1 % 2 == 0 and voffs % 2 == 0, nv

    sRH = 4; sEA = 6; sSRC = 8; sDST = 10; sWR = 12; sW0 = 14; sW1 = 16; sDBG = 18
    spend = 4
    sX = 20; sO = 24; sWS = 28
    scap = 32; sw = 33; sI0 = 34; sWin = 35; sn = 36; s512 = 37; st0 = 38; st1 = 39; sM = 40; stot = 41; sq = 42; snonce = 43
    smask = 44; sovf = 60; sgk = 60; smore = 62; scol = 64; spoll = 66; sfirst = 67; sHI = 68; sPH = 69; sZ = 69
    s4100 = 64; s800 = 65; stmp = 70; sfull = 72
    TS = 74; sthr = 4
    nst = [0]
    def stamp(i):
        if o.diag:
            a(f"s_memrealtime s[{TS+2*i}:{TS+2*i+1}]")
    def clk(i):
        if o.diag:
            a(f"s_memtime s[{TS+24+2*i}:{TS+25+2*i}]")
    ld = o.k1ld
    stamp(0)
    a(f"""
    s_cmp_ge_u32 s2, 256
    s_cbranch_scc1 F_end
    s_load_dwordx8 s[{sRH}:{sRH+7}], s[0:1], 8
    s_load_dwordx4 s[{sWR}:{sWR+3}], s[0:1], 40
    s_load_dwordx2 s[{sW1}:{sW1+1}], s[0:1], 56
    s_load_dwordx2 s[{sDBG}:{sDBG+1}], s[0:1], 80
    s_load_dwordx2 s[{sX}:{sX+1}], s[0:1], 0
    s_load_dwordx2 s[{sO}:{sO+1}], s[0:1], 72
    s_load_dwordx2 s[{sWS}:{sWS+1}], s[0:1], 88
    s_getpc_b64 s[{sovf}:{sovf+1}]
    F_pc:
    v_lshlrev_b32 v{vt1}, 7, v0
    v_cmp_gt_u32 vcc, F_end-F_pc, v{vt1}
    s_and_saveexec_b64 s[{smore}:{smore+1}], vcc
    s_cbranch_execz F_notouch
    global_load_dword v{vpf}, v{vt1}, s[{sovf}:{sovf+1}]
    F_notouch:
    s_mov_b64 exec, s[{smore}:{smore+1}]
    v_lshrrev_b32 v{vt0}, 6, v0
    s_mul_i32 s3, s2, {CHUNK*4}
    v_readfirstlane_b32 s{sw}, v{vt0}
    s_mov_b32 s{sWS+2}, {WS_END}
    s_mov_b32 s{sWS+3}, 0x20000
    s_mov_b32 s{sX+2}, 5120000
    s_mov_b32 s{sX+3}, 0x20000
    s_mov_b32 s{sO+2}, 5120000
    s_mov_b32 s{sO+3}, 0x20000
    s_cmp_ge_u32 s{sw}, 10
    s_cbranch_scc1 F_helper
    """)
    P = vacc
    pD = P; pS = P + 4; pE = P + 8; pR0 = P + 10; pR1 = P + 14; pH = P + 18; pRk = P + 22; pRec = P + 26
    pa0 = P + 42; pa1 = P + 43; pa2 = P + 44; p16 = P + 45; pT = P + 46
    pw0 = P + 50; pw1 = P + 51; pl = P + 52; pso = P + 53; pla = P + 57
    wraw = vW; wsc = vW + 16; wtmp = vW + 20; wad = vW + 28
    def unpack(dst, src, hi):
        a(f"v_and_b32 v{dst}, s{sHI}, v{src}" if hi else f"v_lshlrev_b32 v{dst}, 16, v{src}")
    a(f"""
    v_lshl_add_u32 v{pa0}, v0, 4, s3
    v_cmp_gt_u32 vcc, {CHUNK//4}, v0
    v_lshrrev_b32 v{pa1}, 1, v{pa0}
    v_add_u32 v{pa2}, v{pa0}, v{pa1}
    s_mov_b64 exec, vcc
    s_waitcnt lgkmcnt(0)
    global_load_dwordx4 v[{pD}:{pD+3}], v{pa0}, s[{sDST}:{sDST+1}] {ld}
    s_barrier
    global_load_dwordx4 v[{pS}:{pS+3}], v{pa0}, s[{sSRC}:{sSRC+1}] {ld}
    global_load_dwordx2 v[{pE}:{pE+1}], v{pa1}, s[{sEA}:{sEA+1}] {ld}
    global_load_dwordx3 v[{pR0}:{pR0+2}], v{pa2}, s[{sRH}:{sRH+1}] {ld}
    global_load_dwordx3 v[{pR1}:{pR1+2}], v{pa2}, s[{sRH}:{sRH+1}] offset:12 {ld}
    s_mov_b64 exec, -1
    v_and_b32 v{pl}, 63, v0
    s_cmp_lt_u32 s{sw}, 4
    s_cselect_b32 s{sW0}, s{sW0}, s{sW1}
    s_cselect_b32 s{sW0+1}, s{sW0+1}, s{sW1+1}
    s_cselect_b32 s{st0}, 0, 4
    s_sub_u32 s{st0}, s{sw}, s{st0}
    s_lshl_b32 s{st0}, s{st0}, 12
    v_lshl_add_u32 v{pw0}, v{pl}, 4, s{st0}
    v_lshrrev_b32 v{pw1}, 3, v{pl}
    s_lshl_b32 s{st0}, s{sw}, 5
    v_add_lshl_u32 v{pw1}, v{pw1}, s{st0}, 1
    s_mul_i32 s3, s2, {RECB}
    v_lshl_add_u32 v{pso}, v0, 4, s3
    v_add_u32 v{pso+1}, 10240, v{pso}
    v_add_u32 v{pso+2}, 20480, v{pso}
    v_add_u32 v{pso+3}, 30720, v{pso}
    v_lshlrev_b32 v{pla}, 4, v0
    v_add_u32 v{pla}, {P_ST}, v{pla}
    v_mov_b32 v{p16}, 16
    s_mov_b32 s{sHI}, 0xffff0000
    s_movk_i32 s{sPH}, {PHC}
    s_movk_i32 s{s4100}, 0x4100
    s_movk_i32 s{s800}, 0x800
    s_mov_b64 exec, vcc
    s_waitcnt vmcnt(4)
    """)
    stamp(1)
    for i in range(4):
        a(f"v_lshlrev_b32_sdwa v{pH+i}, 2, v{pD+i} {SD}BYTE_0")
        a(f"ds_add_rtn_u32 v{pRk+i}, v{pH+i}, v{p16} offset:{P_HIST}")
    a("s_waitcnt lgkmcnt(0)\ns_barrier")
    for i in (1, 3):
        a(f"v_lshrrev_b32 v{pT}, 2, v{pD+i}\nv_and_or_b32 v{pD+i}, v{pT}, s{s800}, v{pD+i}")
    for i in range(4):
        a(f"v_mul_u32_u24_sdwa v{pD+i}, s{s4100}, v{pD+i} {SD}BYTE_1")
    for i in range(4):
        a(f"v_and_b32 v{pD+i}, 0xfc00, v{pD+i}          ; (l&3)<<14 | (l>>2)<<10")
    a("s_barrier")
    for i in range(4):
        a(f"ds_read_b32 v{pH+i}, v{pH+i} offset:{P_BASE}")
    a(f"s_waitcnt lgkmcnt(0)\ns_load_dword s{snonce}, s[{sDBG}:{sDBG+1}], 0")
    for i in range(4):
        a(f"v_add_u32 v{pH+i}, v{pH+i}, v{pRk+i}")
    a("s_waitcnt vmcnt(3)")
    for i in range(4):
        k = pRec + 4 * i + 2
        a(f"v_mul_u32_u24 v{k}, s{sPH}, v{pS+i}")
        a(f"v_lshlrev_b32_sdwa v{k}, 6, v{k} {SD}BYTE_3")
        a(f"v_or_b32 v{k}, v{k}, v{pD+i}")
        a(f"v_lshl_or_b32 v{k}, v{k}, 16, v{pS+i}")
    for i in range(4):
        if i == 0: a("s_waitcnt vmcnt(1)")
        if i == 2:
            a("s_waitcnt vmcnt(0)")
            stamp(2)
        R = pR0 if i < 2 else pR1
        c = pRec + 4 * i
        unpack(pT, pE + i // 2, i & 1)
        for j in range(3):
            el = 3 * (i & 1) + j
            unpack(pT + 1 + j, R + el // 2, el & 1)
        for j in range(3):
            a(f"v_mul_f32 v{pT+1+j}, v{pT}, v{pT+1+j}")
        a(f"v_cvt_pk_bf16_f32 v{c}, v{pT}, v{pT+1}")
        a(f"v_cvt_pk_bf16_f32 v{c+1}, v{pT+2}, v{pT+3}")
        a(f"ds_write_b96 v{pH+i}, v[{c}:{c+2}]")
    a("s_mov_b64 exec, -1")
    for j in range(4):
        a(f"global_load_dwordx4 v[{wraw+4*j}:{wraw+4*j+3}], v{pw0}, s[{sW0}:{sW0+1}] offset:{1024*j}")
    for j in range(4):
        a(f"global_load_ushort v{wsc+j}, v{pw1}, s[{sWR}:{sWR+1}] offset:{16*j}")
    a(f"""
    v_cmp_gt_u32 vcc, {(RECB - 30720)//16}, v0
    s_waitcnt lgkmcnt(0)
    s_cmp_eq_u32 s{snonce}, 0
    s_cbranch_scc1 F_tagA
    F_tagA_ret:
    s_barrier
    """)
    stamp(3)
    for j in range(4):
        a(f"ds_read_b128 v[{P+4*j}:{P+4*j+3}], v{pla} offset:{10240*j}")
    for j in range(4):
        if j == 3: a("s_mov_b64 exec, vcc")
        a(f"s_waitcnt lgkmcnt({3-j})\nv_mov_b32 v{P+4*j+3}, s{snonce}\nglobal_store_dwordx4 v{pso+j}, v[{P+4*j}:{P+4*j+3}], s[{sWS}:{sWS+1}] sc1")
    a("s_mov_b64 exec, -1")
    a(f"""
    F_init:
    s_and_b32 s{st1}, s2, 7
    s_lshl_b32 s{st1}, s{st1}, 5
    s_lshr_b32 s3, s2, 3
    s_or_b32 s{st1}, s{st1}, s3
    v_and_b32 v{vt1}, 15, v0
    v_lshrrev_b32 v{vt0}, 4, v0
    v_mad_u32_u24 v{vt0}, v{vt1}, 48, v{vt0}
    s_lshr_b32 s3, s{st1}, 2
    s_lshl_b32 s3, s3, 4
    s_bfe_u32 s{st0}, s{st1}, 0x10001
    s_lshl_b32 s{st0}, s{st0}, 10
    s_add_u32 s3, s3, s{st0}
    s_and_b32 s{st0}, s{st1}, 1
    s_lshl_b32 s{st0}, s{st0}, 3
    s_add_u32 s3, s3, s{st0}
    s_add_u32 s3, s3, {WS_OFF}
    v_lshl_add_u32 v{vpa}, v{vt0}, 11, s3
    v_mov_b32 v{voffs}, 0
    v_cmp_gt_u32 s[{smask}:{smask+1}], s{sWS+2}, v{vpa}
    s_mov_b64 exec, s[{smask}:{smask+1}]
    buffer_load_dwordx2 v[{voffs}:{voffs+1}], v{vpa}, s[{sWS}:{sWS+3}], 0 offen sc1
    s_mov_b64 exec, -1
    v_mov_b32 v{vfour}, 4
    s_movk_i32 s{s512}, 512
    s_mov_b32 s{sI0}, 0
    s_movk_i32 s{sWin}, 512
    s_movk_i32 s{scap}, {BINCAP*4}
    s_mov_b64 s[{scol}:{scol+1}], -1
    s_mov_b32 s{sM}, 0xc000ffff
    s_mov_b32 s{sZ}, 0x{ZM:x}
    s_mov_b32 s{sfirst}, 1
    v_and_b32 v{vt0}, 31, v0
    v_lshlrev_b32 v{vlo4}, 2, v{vt0}
    v_and_b32 v{vt2}, 3, v0
    v_lshlrev_b32 v{vt0}, 17, v{vt2}
    v_sub_u32 v{vKc}, {L_COEF}, v{vt0}
    v_bfe_u32 v{vt0}, v0, 4, 1
    v_mul_u32_u24 v{vt0}, 0x5555, v{vt0}
    v_add_u32 v{vidx}, 0x8888, v{vt0}
    """)
    for i in range(64): a(f"v_mov_b32 v{vacc+i}, 0")
    a(f"""
    K2_batch:
    v_and_b32 v{vt1}, 15, v0
    v_lshrrev_b32 v{vt0}, 4, v0
    v_mad_u32_u24 v{vt0}, v{vt1}, 48, v{vt0}
    v_mul_u32_u24 v{vpb}, {RECB}, v{vt0}
    v_lshlrev_b32 v{vi16}, 4, v{vt1}
    v_lshlrev_b32 v{vslot}, 3, v0
    v_add_u32 v{vslot}, {L_COEF}, v{vslot}
    s_lshl_b32 s3, s{sw}, 4
    v_add_lshl_u32 v{vcidx}, v{vt1}, s3, 2
    s_mul_i32 s{st0}, s{sw}, {WREG}
    s_add_u32 s{st0}, s{st0}, {L_KEYS}
    v_bfe_u32 v{vt0}, v0, 5, 1
    v_lshl_add_u32 v{vka}, v{vt0}, 4, s{st0}
    v_lshl_add_u32 v{vkt}, v{vt0}, 5, s{st0}
    v_and_b32 v{vt0}, 12, v0
    v_add_u32 v{vkt}, v{vkt}, v{vt0}
    v_lshlrev_b32 v{vt0}, 2, v0
    v_mov_b32 v{vt1}, 0
    v_mov_b32 v{vt2}, 0
    ds_write_b32 v{vt0}, v{vt1} offset:{L_CNT}
    v_mov_b32 v{vt0}, {L_ZERO}
    ds_write_b64 v{vt0}, v[{vt1}:{vt2}]
    s_mov_b32 s{spoll}, 0x40000
    s_mov_b64 s[{sfull}:{sfull+1}], 0
    s_waitcnt vmcnt(0) lgkmcnt(0)
    s_barrier
    """)
    stamp(4)
    a(f"""
    s_cmp_eq_u32 s{sfirst}, 0
    s_cbranch_scc1 F_polled
    s_mov_b64 exec, s[{smask}:{smask+1}]
    F_poll:
    v_cmp_ne_u32 vcc, s{snonce}, v{voffs+1}
    s_and_b64 exec, exec, vcc
    s_cbranch_scc1 F_repoll
    s_mov_b64 exec, -1
    F_polled:
    """)
    stamp(5)
    a(f"""
    v_and_b32 v{vt0}, 0xffff, v{voffs}
    v_lshrrev_b32 v{vt1}, 16, v{voffs}
    v_add3_u32 v{vbase}, v{vpb}, v{vt0}, s{sI0}
    v_subrev_u32 v{vt1}, s{sI0}, v{vt1}
    v_min_i32 v{vrem}, s{sWin}, v{vt1}
    v_cndmask_b32 v{vrem}, 0, v{vrem}, s[{scol}:{scol+1}]
    v_cmp_lt_i32 s[{smore}:{smore+1}], s{sWin}, v{vt1}
    s_mov_b64 s[{smask+10}:{smask+11}], 0
    s_cmp_ge_u32 s{sw}, 4
    s_cbranch_scc1 F_nor5
    """)
    def rload(r, b, rm, col):
        a(f"""
        v_add_u32_dpp v{vha+r}, v{b}, v{vi16} row_newbcast:{col} row_mask:0xf bank_mask:0xf
        v_sub_u32_dpp v{vt0}, v{rm}, v{vi16} row_newbcast:{col} row_mask:0xf bank_mask:0xf
        v_cmp_lt_i32 s[{smask+2*r}:{smask+2*r+1}], 0, v{vt0}
        s_or_b64 exec, s[{smask+2*r}:{smask+2*r+1}], 1
        buffer_load_dwordx4 v[{vrec+4*r}:{vrec+4*r+3}], v{vha+r}, s[{sWS}:{sWS+3}], 0 offen sc1
        s_mov_b64 exec, -1
        """)
    rload(5, vbase, vrem, 5)
    a("F_nor5:")
    for r in range(5): rload(r, vbase, vrem, r)
    a(f"""
    v_subrev_u32 v{vr1}, 256, v{vrem}
    v_lshlrev_b32 v{vpa}, 16, v0
    v_cmp_lt_i32 s[{sovf}:{sovf+1}], 0, v{vr1}
    s_mov_b64 s[{smask+2*X0}:{smask+2*X0+1}], 0
    s_bcnt1_i32_b64 s{st1}, s[{sovf}:{sovf+1}]
    s_cbranch_scc0 K2_x1_ret
    v_add_u32 v{vb1}, 256, v{vbase}
    v_mov_b32 v{vt2}, 60
    v_mbcnt_lo_u32_b32 v{vt0}, s{sovf}, 0
    v_mbcnt_hi_u32_b32 v{vt0}, s{sovf+1}, v{vt0}
    v_and_b32 v{vt1}, 3, v{vt0}
    v_and_b32 v{vt0}, 28, v{vt0}
    v_lshl_add_u32 v{vt0}, v{vt1}, 6, v{vt0}
    v_cndmask_b32 v{vt0}, v{vt2}, v{vt0}, s[{sovf}:{sovf+1}]
    ds_permute_b32 v{vb1}, v{vt0}, v{vb1}
    ds_permute_b32 v{vr1}, v{vt0}, v{vr1}
    s_waitcnt lgkmcnt(0)
    s_nop 1
    """)
    rload(X0, vb1, vr1, 0)
    a(f"""
    s_cmp_gt_u32 s{st1}, 4
    s_cbranch_scc1 K2_x1
    K2_x1_ret:
    s_cmp_lg_u64 s[{smore}:{smore+1}], 0
    s_cbranch_scc1 K2_setmore
    K2_setmore_ret:
    s_cmp_eq_u32 s{sfirst}, 0
    s_cbranch_scc1 F_wdone
    s_mov_b32 s{sfirst}, 0
    s_cmp_ge_u32 s{sw}, 10
    s_cbranch_scc1 F_wdone
    v_bfe_u32 v{wad}, v0, 3, 3
    s_mul_i32 s3, s{sw}, {32*WSTR}
    s_add_u32 s3, s3, {L_W}
    v_mul_u32_u24 v{wad}, {WSTR}, v{wad}
    v_and_b32 v{wtmp}, 7, v0
    v_lshl_add_u32 v{wtmp}, v{wtmp}, 4, s3
    v_add_u32 v{wad}, v{wad}, v{wtmp}
    """)
    for j in range(4):
        a(f"v_lshlrev_b32 v{wsc+j}, 16, v{wsc+j}")
        for i in range(8):
            unpack(wtmp + i, wraw + 4 * j + i // 2, i & 1)
        for i in range(8):
            a(f"v_mul_f32 v{wtmp+i}, v{wsc+j}, v{wtmp+i}")
        for i in range(4):
            a(f"v_cvt_pk_bf16_f32 v{wraw+4*j+i}, v{wtmp+2*i}, v{wtmp+2*i+1}")
        a(f"ds_write_b128 v{wad}, v[{wraw+4*j}:{wraw+4*j+3}] offset:{8*j*WSTR}")
    a("F_wdone:")
    for r in range(NR0 + 1):
        a(f"s_mov_b64 s[{spend+2*r}:{spend+2*r+1}], s[{smask+2*r}:{smask+2*r+1}]")
    def pass1(r):
        k = vrec + 4 * r + 2
        a(f"""
        s_mov_b64 exec, s[{spend+2*r}:{spend+2*r+1}]
        v_and_or_b32 v{vt0}, v{k}, s{sZ}, v{k+1}
        v_cmpx_eq_u32 vcc, s{snonce}, v{vt0}
        v_bfe_u32 v{vha+r}, v{k}, 20, 10
        v_add_u32 v{vt0}, {(r*NT) << 16}, v{vpa}
        s_andn2_b64 s[{spend+2*r}:{spend+2*r+1}], s[{spend+2*r}:{spend+2*r+1}], exec
        ds_add_rtn_u32 v{k+1}, v{vha+r}, v{vfour} offset:{L_CNT}
        ds_write_b64 v{vslot}, v[{k-2}:{k-1}] offset:{r*NT*8}
        v_and_or_b32 v{k}, v{k}, s{sM}, v{vt0}
        """)
    def keyw(r):
        k = vrec + 4 * r + 2
        a(f"""
        s_andn2_b64 s[{stmp}:{stmp+1}], s[{smask+2*r}:{smask+2*r+1}], s[{spend+2*r}:{spend+2*r+1}]
        s_mov_b64 exec, s[{stmp}:{stmp+1}]
        v_cmpx_gt_u32 vcc, s{scap}, v{k+1}
        v_mad_u32_u24 v{vt1}, v{vha+r}, {BINE}, v{k+1}
        s_xor_b64 s[{stmp}:{stmp+1}], s[{stmp}:{stmp+1}], exec
        ds_write_b32 v{vt1}, v{k} offset:{L_KEYS}
        s_or_b64 s[{sfull}:{sfull+1}], s[{sfull}:{sfull+1}], s[{stmp}:{stmp+1}]
        """)
    a("F_sweep:\ns_waitcnt vmcnt(4)")
    pass1(0); pass1(5)
    a("s_waitcnt vmcnt(3) lgkmcnt(0)")
    pass1(1); keyw(0); keyw(5)
    for r in (2, 3):
        a(f"s_waitcnt vmcnt({4-r}) lgkmcnt(0)")
        pass1(r); keyw(r - 1)
    a("s_waitcnt vmcnt(0) lgkmcnt(0)")
    pass1(4); pass1(X0); keyw(3)
    a(f"s_or_b64 s[{sovf}:{sovf+1}], s[{spend}:{spend+1}], s[{spend+2}:{spend+3}]")
    for r in range(2, NR0 + 1):
        a(f"s_or_b64 s[{sovf}:{sovf+1}], s[{sovf}:{sovf+1}], s[{spend+2*r}:{spend+2*r+1}]")
    a("s_cbranch_scc1 F_retry")
    if o.mall == 4:
        a(f"s_cmp_eq_u32 s{sw}, 11\ns_cbranch_scc1 F_prefetch\nF_prefetched:")
    a("s_waitcnt lgkmcnt(0)")
    keyw(4); keyw(X0)
    a(f"""
    s_cbranch_scc1 K2_setslow
    K2_setslow_ret:
    s_mov_b64 exec, -1
    v_and_b32 v{vt3}, 63, v0
    v_lshl_add_u32 v{vt3}, v{vt3}, 2, s{st0}
    v_mov_b32 v{vA}, {L_FLAG}
    s_waitcnt lgkmcnt(0)
    s_barrier
    """)
    stamp(6)
    if o.mall == 3:
        a(f"s_cmp_eq_u32 s{sw}, 11\ns_cbranch_scc1 F_prefetch\nF_prefetched:")
    a(f"""
    ds_read_b32 v{vt0}, v{vcidx} offset:{L_CNT}
    ds_read_b64 v[{vA}:{vA+1}], v{vA}
    """)
    for j in range(1, 16):
        a(f"ds_read_b32 v{vB+j}, v{vt3} offset:{j*BINE*4}")
        if j == 13: a(f"s_waitcnt lgkmcnt(13)\nv_mov_b32 v{vt2}, v{vt0}")
    a(f"""
    v_readfirstlane_b32 s{st1}, v{vA}
    v_readfirstlane_b32 s{smore}, v{vA+1}
    """)
    dpp_scan(a, vt2, 16)
    a(f"""
    s_cmp_lg_u32 s{st1}, 0
    s_cbranch_scc1 K2_goslow
    v_readlane_b32 s{stot}, v{vt2}, 15
    v_sub_u32 v{vt2}, v{vt2}, v{vt0}
    v_mov_b32 v{vA}, 0x{DUMMY:x}
    s_mov_b32 exec_hi, 0xffff
    v_add_u32 v{vA+1}, s{stot}, v{vt3}
    s_waitcnt lgkmcnt(0)
    """)
    for j in range(1, 16):
        t = vt0 if j & 1 else vt1
        a(f"v_add_u32_dpp v{t}, v{vt2}, v{vt3} row_newbcast:{j} row_mask:0xf bank_mask:0xf\nds_write_b32 v{t}, v{vB+j}")
    a(f"""
    ds_write_b32 v{vA+1}, v{vA}
    s_mov_b64 exec, -1
    """)
    stamp(7); clk(0)
    def keys_read():
        a(f"""
        ds_read_b128 v[{vK}:{vK+3}], v{vka}
        ds_read_b128 v[{vK+4}:{vK+7}], v{vka} offset:32
        ds_read2_b32 v[{vKT}:{vKT+1}], v{vkt} offset0:0 offset1:4
        v_add_u32 v{vka}, 64, v{vka}
        v_add_u32 v{vkt}, 64, v{vkt}
        """)
    def addr_calc():
        for r in range(8):
            a(f"v_mad_u32_u16 v{vK+r}, v{vK+r}, s{s512}, v{vlo4}")
        for r in range(2):
            a(f"v_mad_u32_u16 v{vKT+r}, v{vKT+r}, 8, v{vKc} op_sel:[1,0,0,0]")
    def row_loads(r0, r1):
        for r in range(r0, r1):
            for q in range(4):
                a(f"buffer_load_dword v{vB+8*q+r}, v{vK+r}, s[{sX}:{sX+3}], 0 offen offset:{128*q}")
    a(f"""
    s_cmp_eq_u32 s{stot}, 0
    s_cbranch_scc1 F_wfrag
    """)
    keys_read()
    a(f"""
    s_sub_i32 s{sn}, s{stot}, 64
    s_mul_i32 s{sq}, s{stot}, {o.pth}
    s_lshr_b32 s{sq}, s{sq}, 4
    s_setprio 3
    s_waitcnt lgkmcnt(0)
    """)
    addr_calc()
    row_loads(0, 8)
    a(f"""
    F_wfrag:
    v_bfe_u32 v{vA}, v0, 4, 2                      ; g
    v_bfe_u32 v{vA+1}, v0, 2, 2                    ; r
    v_lshl_add_u32 v{vA+2}, v{vA}, 3, v{vA+1}      ; 8g + r
    v_bfe_u32 v{vA+1}, v0, 2, 1
    v_lshl_add_u32 v{vA}, v{vA}, 2, v{vA+1}
    v_bfe_u32 v{vA+1}, v0, 3, 1
    v_lshl_add_u32 v{vA}, v{vA+1}, 6, v{vA}        ; 4g + (r&1) + 64(r>>1)
    s_and_b32 s3, s{sw}, 3
    s_lshl_b32 s3, s3, 5
    s_add_u32 s3, s3, {L_W}
    v_and_b32 v{vA+1}, 3, v0
    v_lshl_add_u32 v{vA+1}, v{vA+1}, 3, s3
    s_movk_i32 s3, {WSTR}
    v_mad_u32_u24 v{vA}, v{vA}, s3, v{vA+1}
    v_mad_u32_u24 v{vA+2}, v{vA+2}, s3, v{vA+1}
    """)
    for f in range(10):
        for tt in range(2):
            if f < 8: ad, off = vA, (128 * (f >> 2) + 16 * (f & 3) + 2 * tt) * WSTR
            else: ad, off = vA + 2, (256 + 32 * (f - 8) + 4 * tt) * WSTR
            a(f"ds_read_b64_tr_b16 v[{vW+4*f+2*tt}:{vW+4*f+2*tt+1}], v{ad} offset:{off}")
    a(f"""
    v_and_b32 v{vt0}, 15, v0
    v_bfe_u32 v{vt3}, v0, 4, 2
    s_lshr_b32 s{st0}, s{sw}, 2
    s_mul_i32 s3, s{st0}, {16*TSTR}
    s_add_u32 s3, s3, {L_T}
    v_mul_u32_u24 v{vra}, {TSTR}, v{vt0}
    v_lshl_add_u32 v{vra}, v{vt3}, 4, v{vra}
    v_add_u32 v{vra}, s3, v{vra}
    s_mul_i32 s{sgk}, s{st0}, {4*WREG}
    s_add_u32 s{sgk}, s{sgk}, {L_KEYS}
    s_and_b32 s{st1}, s{sw}, 3
    s_lshl_b32 s3, s{st1}, 5
    s_add_u32 s3, s3, s{sgk}
    v_mul_u32_u24 v{voa}, {OSTR}, v{vt0}
    v_lshl_add_u32 v{voa}, v{vt3}, 3, v{voa}
    v_add_u32 v{voa}, s3, v{voa}
    s_mul_i32 s3, s{sw}, {4*TSTR}
    s_add_u32 s3, s3, {L_T}
    v_bfe_u32 v{vt0}, v0, 5, 1
    v_mul_u32_u24 v{vt3}, {TSTR}, v{vt0}
    v_add3_u32 v{vwb}, v{vt3}, v{vlo4}, s3
    v_add_u32 v{vwa}, v{vwb}, v{vlo4}
    s_mul_i32 s3, s{st1}, {2*OSTR}
    s_add_u32 s3, s3, s{sgk}
    v_mul_u32_u24 v{vt3}, {OSTR}, v{vt0}
    v_lshl_add_u32 v{vt3}, v{vlo4}, 2, v{vt3}
    v_add_u32 v{vsr}, s3, v{vt3}
    s_lshl_b32 s3, s{st0}, 3
    s_add_u32 s3, s3, s{st1}
    s_lshl_b32 s3, s3, 9
    s_add_u32 s3, s3, s2
    s_lshl_b32 s3, s3, 9
    v_lshl_add_u32 v{vt3}, v{vlo4}, 2, s3
    v_lshl_add_u32 v{vso}, v{vt0}, 17, v{vt3}
    s_lshl_b32 s{sgk}, s{st0}, 2
    s_add_u32 s{sgk}, s{sgk}, {L_FLAG+16}
    v_mov_b32 v{vt0}, {L_FLAG+8}
    s_mov_b64 exec, 1
    s_waitcnt lgkmcnt(0)
    ds_add_u32 v{vt0}, v{vfour}
    s_mov_b64 exec, -1
    s_mul_i32 s3, s2, {o.alpha}
    s_sub_u32 s3, 0x10000, s3
    s_mul_i32 s3, s3, s{stot}
    s_lshr_b32 s3, s3, 16
    s_cmp_eq_u32 s{sw}, {o.tw}
    s_cselect_b32 s{sthr}, s3, 0xc0000000
    s_cmp_eq_u32 s{stot}, 0
    s_cbranch_scc1 K2_done
    K2_loop:
    ds_read_b64_tr_b16 v[{vA}:{vA+1}], v{vKT}
    ds_read_b64_tr_b16 v[{vA+2}:{vA+3}], v{vKT+1}
    """)
    keys_read()
    a(f"""
    {f's_cmp_le_i32 s{sn}, s{sthr}' if o.na else ''}
    {'s_cbranch_scc1 F_pfB' if o.na else ''}
    F_pfB_ret:
    s_cmp_ge_i32 s{sn}, s{sq}
    s_cbranch_scc1 K2_prio
    s_setprio 2
    K2_prio:
    s_waitcnt lgkmcnt(0)
    """)
    addr_calc()
    a(f"s_cmp_le_i32 s{sn}, 0\ns_waitcnt vmcnt(0)")
    for q in range(4):
        a(f"v_smfmac_f32_32x32x32_bf16 v[{vacc+16*q}:{vacc+16*q+15}], v[{vA}:{vA+3}], v[{vB+8*q}:{vB+8*q+7}], v{vidx}")
    a("s_cbranch_scc1 K2_done")
    row_loads(0, 4)
    a(f"s_sub_i32 s{sn}, s{sn}, 64\ns_cmp_le_i32 s{sn}, -32\ns_cbranch_scc1 K2_loop")
    row_loads(4, 8)
    a("s_branch K2_loop")

    def tagpoll(name, ret):
        a(f"""
        {name}:
        s_mov_b32 s{spoll}, 0x40000
        v_mov_b32 v{vt0}, 0
        {name}_l:
        global_load_dword v{vt1}, v{vt0}, s[{sDBG}:{sDBG+1}] sc1
        s_waitcnt vmcnt(0)
        v_readfirstlane_b32 s{snonce}, v{vt1}
        s_cmp_lg_u32 s{snonce}, 0
        s_cbranch_scc1 {ret}
        s_sub_u32 s{spoll}, s{spoll}, 1
        s_cbranch_scc0 {name}_l
        s_endpgm
        """)
    h = vacc; hp = vW
    a(f"""
    F_helper:
    s_cmp_eq_u32 s{sw}, 10
    s_cbranch_scc1 F_scan
    s_cmp_lg_u32 s2, 0
    s_cbranch_scc1 F_h1
    s_memrealtime s[{smask}:{smask+1}]
    v_mov_b32 v{vt0}, 0
    s_waitcnt lgkmcnt(0)
    s_mul_i32 s3, s{smask}, 0x9e3779b1
    s_andn2_b32 s3, s3, 0x{ZM:x}
    s_or_b32 s3, s3, 1
    v_mov_b32 v{vt1}, s3
    global_store_dword v{vt0}, v{vt1}, s[{sDBG}:{sDBG+1}] sc1
    F_h1:
    v_and_b32 v{vt0}, 63, v0
    v_lshlrev_b32 v{vt0}, 7, v{vt0}
    s_lshr_b32 s3, s2, 3
    s_lshl_b32 s{st0}, s3, 9
    v_add_u32 v{vt1}, s{st0}, v{vt0}
    s_mul_i32 s{st0}, s3, 768
    v_add_u32 v{vt2}, s{st0}, v{vt0}
    s_waitcnt lgkmcnt(0)
    s_mov_b64 exec, 15
    global_load_dword v{vpf}, v{vt1}, s[{sW0}:{sW0+1}]
    s_mov_b64 exec, 63
    global_load_dword v{vpf}, v{vt2}, s[{sW1}:{sW1+1}]
    s_mov_b64 exec, 31
    global_load_dword v{vpf}, v{vt0}, s[{sWR}:{sWR+1}]
    s_mov_b64 exec, -1
    s_barrier
    s_barrier
    s_barrier
    s_load_dword s{snonce}, s[{sDBG}:{sDBG+1}], 0
    s_barrier
    s_waitcnt lgkmcnt(0)
    s_cmp_lg_u32 s{snonce}, 0
    s_cbranch_scc1 F_init
    """)
    tagpoll("F_tagC", "F_init")
    a(f"""
    F_scan:
    v_and_b32 v{h}, 63, v0
    v_lshlrev_b32 v{h+1}, 4, v{h}
    v_mov_b32 v{h+4}, 0
    v_mov_b32 v{h+5}, 0
    v_mov_b32 v{h+6}, 0
    v_mov_b32 v{h+7}, 0
    ds_write_b128 v{h+1}, v[{h+4}:{h+7}] offset:{P_HIST}
    s_waitcnt lgkmcnt(0)
    s_barrier
    s_lshl_b32 s3, s2, 11
    s_add_u32 s3, s3, {WS_OFF}
    v_add_u32 v{hp+8}, s3, v{h+1}
    v_and_b32 v{h+2}, 7, v{h}
    v_lshrrev_b32 v{h+3}, 3, v{h}
    v_lshlrev_b32 v{h+3}, 2, v{h+3}
    v_lshl_add_u32 v{h+2}, v{h+2}, 7, v{h+3}
    v_add_u32 v{h+3}, {P_BASE}, v{h+2}
    v_add_u32 v{h+2}, {P_HIST}, v{h+2}
    s_barrier
    ds_read2_b32 v[{h+4}:{h+5}], v{h+2} offset0:0 offset1:8
    ds_read2_b32 v[{h+6}:{h+7}], v{h+2} offset0:16 offset1:24
    s_waitcnt lgkmcnt(0)
    v_add_u32 v{h+9}, v{h+4}, v{h+5}
    v_add_u32 v{h+10}, v{h+9}, v{h+6}
    v_add_u32 v{h+11}, v{h+10}, v{h+7}
    v_mov_b32 v{h+12}, v{h+11}
    """)
    dpp_scan(a, h + 12)
    a(f"""
    v_sub_u32 v{h+16}, v{h+12}, v{h+11}
    v_add_u32 v{h+20}, {P_ST}, v{h+16}
    v_add_u32 v{h+21}, v{h+20}, v{h+4}
    ds_write2_b32 v{h+3}, v{h+20}, v{h+21} offset0:0 offset1:8
    v_add_u32 v{h+22}, v{h+20}, v{h+9}
    v_add_u32 v{h+23}, v{h+20}, v{h+10}
    ds_write2_b32 v{h+3}, v{h+22}, v{h+23} offset0:16 offset1:24
    s_waitcnt lgkmcnt(0)
    s_barrier
    s_load_dword s{snonce}, s[{sDBG}:{sDBG+1}], 0
    v_add_u32 v{h+17}, v{h+16}, v{h+4}
    v_add_u32 v{h+18}, v{h+16}, v{h+9}
    v_add_u32 v{h+19}, v{h+16}, v{h+10}
    v_lshl_or_b32 v{hp}, v{h+4}, 16, v{h+16}
    v_lshl_or_b32 v{hp+2}, v{h+5}, 16, v{h+17}
    v_lshl_or_b32 v{hp+4}, v{h+6}, 16, v{h+18}
    v_lshl_or_b32 v{hp+6}, v{h+7}, 16, v{h+19}
    s_waitcnt lgkmcnt(0)
    s_cmp_eq_u32 s{snonce}, 0
    s_cbranch_scc1 F_tagD
    F_tagD_ret:
    s_nop 1
    v_mov_b32 v{hp+1}, s{snonce}
    v_mov_b32 v{hp+3}, s{snonce}
    v_mov_b32 v{hp+5}, s{snonce}
    v_mov_b32 v{hp+7}, s{snonce}
    global_store_dwordx4 v{hp+8}, v[{hp}:{hp+3}], s[{sWS}:{sWS+1}] sc1
    global_store_dwordx4 v{hp+8}, v[{hp+4}:{hp+7}], s[{sWS}:{sWS+1}] offset:1024 sc1
    s_barrier
    s_branch F_init
    """)
    if o.mall:
        per = o.na if o.na else -(-40000 // 256)
        a(f"""
        F_prefetch:
        s_mov_b64 exec, -1
        v_and_b32 v{vt0}, 63, v0
        s_mul_i32 s3, s2, {per*128}
        v_lshl_add_u32 v{vt1}, v{vt0}, 7, s3
        """)
        for i in range(0, per, 64):
            n = min(64, per - i)
            if n < 64: a(f"v_cmp_gt_u32 vcc, {n}, v{vt0}\ns_mov_b64 exec, vcc")
            a(f"buffer_load_dword v{vpf}, v{vt1}, s[{sX}:{sX+3}], 0 offen\nv_add_u32 v{vt1}, 8192, v{vt1}")
        a("s_mov_b64 exec, -1\ns_branch F_prefetched")
        if o.na:
            perb = -(-(40000 - 256 * o.na) // 256)
            a(f"""
            F_pfB:
            s_mov_b32 s{sthr}, 0xc0000000
            s_mul_i32 s3, s2, {perb*128}
            s_add_u32 s3, s3, {256*o.na*128}
            v_and_b32 v{vpg}, 63, v0
            v_lshl_add_u32 v{vpg}, v{vpg}, 7, s3
            """)
            for i in range(0, perb, 64):
                n = min(64, perb - i)
                if n < 64: a(f"s_bfm_b64 exec, {n}, 0")
                a(f"buffer_load_dword v{vpf}, v{vpg}, s[{sX}:{sX+3}], 0 offen\nv_add_u32 v{vpg}, 8192, v{vpg}")
            a("s_mov_b64 exec, -1\ns_branch F_pfB_ret")

    vP = vB; vD = vB + 16
    vF = vacc
    def arrive_wait(name, off, spec=None):
        a(f"""
        v_mov_b32 v{vt0}, s{sgk}
        s_mov_b64 exec, 1
        ds_add_rtn_u32 v{vt1}, v{vt0}, v{vfour} offset:{off}
        s_mov_b64 exec, -1
        """)
        if spec: spec()
        a(f"""
        s_waitcnt lgkmcnt({2 if spec else 0})
        v_readfirstlane_b32 s3, v{vt1}
        s_cmp_eq_u32 s3, 12
        s_cbranch_scc1 {name}_ok
        s_setprio 0
        {name}:
        ds_read_b32 v{vt1}, v{vt0} offset:{off}
        """)
        if spec: spec()
        a(f"""
        s_sub_u32 s{spoll}, s{spoll}, 1
        s_cbranch_scc1 F_end
        s_waitcnt lgkmcnt({2 if spec else 0})
        v_readfirstlane_b32 s3, v{vt1}
        s_cmp_lg_u32 s3, 16
        s_cbranch_scc1 {name}
        {name}_ok:
        s_setprio 1
        """)
    a(f"""
    K2_done:
    s_cmp_lg_u32 s{smore}, 0
    s_cbranch_scc1 K2_next
    s_cmp_eq_u32 s{sWin}, 16
    s_cbranch_scc1 K2_next
    K2_last:
    s_setprio 3
    """)
    stamp(8); clk(1)
    a(f"""
    s_mov_b32 s{spoll}, 0x1000000
    K2_guard:
    ds_read_b32 v{vt2}, v{vt0}
    s_sub_u32 s{spoll}, s{spoll}, 1
    s_cbranch_scc1 F_end
    s_nop 5
    s_waitcnt lgkmcnt(0)
    v_readfirstlane_b32 s3, v{vt2}
    s_cmp_lg_u32 s3, 48
    s_cbranch_scc1 K2_guard
    """)
    for cp in range(2):
        R = lambda p, q, pi: vacc + 16 * q + 8 * pi + 4 * cp + p
        cv = lambda d, p, q: a(f"v_cvt_pk_bf16_f32 v{d}, v{R(p,q,0)}, v{R(p,q,1)}")
        off = 2 * cp * TSTR
        for oo in (1, 2, 3):
            d = vP + 4 * oo
            cv(d, oo, 0); cv(d + 1, 0, oo)
            a(f"ds_write_b64 v{vwa}, v[{d}:{d+1}] offset:{off + 256 + 384*(oo-1)}")
        for pi in range(2):
            a(f"v_add_f32 v{R(1,1,pi)}, v{R(1,1,pi)}, v{R(2,2,pi)}")
            a(f"v_sub_f32 v{R(2,3,pi)}, v{R(2,3,pi)}, v{R(3,2,pi)}")
            a(f"v_sub_f32 v{R(3,1,pi)}, v{R(3,1,pi)}, v{R(1,3,pi)}")
            a(f"v_sub_f32 v{R(1,2,pi)}, v{R(1,2,pi)}, v{R(2,1,pi)}")
            a(f"v_add_f32 v{R(1,1,pi)}, v{R(1,1,pi)}, v{R(3,3,pi)}")
        cv(vP, 0, 0); cv(vP + 1, 1, 1)
        a(f"ds_write_b64 v{vwa}, v[{vP}:{vP+1}] offset:{off}")
        for oo, (p4, q4) in ((1, (2, 3)), (2, (3, 1)), (3, (1, 2))):
            d = vP + 4 * oo
            cv(d + 2, p4, q4)
            a(f"ds_write_b32 v{vwb}, v{d+2} offset:{off + 512 + 384*(oo-1)}")
    arrive_wait("K2_s1", 0)
    stamp(9)
    frs = [(0, ks) for ks in range(4)] + [(oo, ks) for ks in range(6) for oo in (1, 2, 3)]
    NF = len(frs); NB = 12
    def rd(i):
        oo, ks = frs[i]
        off = 64 * ks + (0 if oo == 0 else 256 + 384 * (oo - 1))
        a(f"ds_read_b128 v[{vF+4*(i%16)}:{vF+4*(i%16)+3}], v{vra} offset:{off}")
    for i in range(NB): rd(i)
    a(f"s_cmp_lt_u32 s{sw}, 8")
    gate = ([f"v_mul_f32 v{vP+r}, 0xbfb8aa3b, v{vD+r}" for r in range(4)] + [f"v_exp_f32 v{vP+r}, v{vP+r}" for r in range(4)] +
            [f"v_add_f32 v{vP+r}, 1.0, v{vP+r}" for r in range(4)] + [f"v_rcp_f32 v{vP+r}, v{vP+r}" for r in range(4)] +
            [f"v_cvt_pk_bf16_f32 v{vP+4}, v{vD}, v{vD+1}", f"v_cvt_pk_bf16_f32 v{vP+5}, v{vD+2}, v{vD+3}"])
    for i in range(NF):
        oo, ks = frs[i]
        wreg = vW + 4 * (ks if oo == 0 else 4 + ks)
        a(f"s_waitcnt lgkmcnt({min(NB-1, NF-1-i)})")
        c = "0" if ks == 0 else f"v[{vD+4*oo}:{vD+4*oo+3}]"
        a(f"v_mfma_f32_16x16x32_bf16 v[{vD+4*oo}:{vD+4*oo+3}], v[{wreg}:{wreg+3}], v[{vF+4*(i%16)}:{vF+4*(i%16)+3}], {c}")
        if i + NB < NF: rd(i + NB)
        if i == 7:
            a("s_cbranch_scc1 K2_g0")
            for r in range(4):
                a(f"v_add_f32_dpp v{vD+r}, v{vD+r}, v{vD+r} row_ror:8 row_mask:0xf bank_mask:0xf")
            a("K2_g0:")
        if i >= 8:
            for _ in range(2 if i < 12 else 1):
                if gate: a(gate.pop(0))
    assert not gate
    a(f"""
    ds_write_b64 v{voa}, v[{vP+4}:{vP+5}]
    s_cbranch_scc1 K2_g1
    """)
    for r in range(4, 16):
        a(f"v_add_f32_dpp v{vD+r}, v{vD+r}, v{vD+r} row_ror:8 row_mask:0xf bank_mask:0xf")
    a("K2_g1:")
    for oo in range(1, 4):
        for r in range(4):
            a(f"v_mul_f32 v{vD+4*oo+r}, v{vP+r}, v{vD+4*oo+r}")
        a(f"v_cvt_pk_bf16_f32 v{vD+4*oo}, v{vD+4*oo}, v{vD+4*oo+1}\nv_cvt_pk_bf16_f32 v{vD+4*oo+1}, v{vD+4*oo+2}, v{vD+4*oo+3}")
        a(f"ds_write_b64 v{voa}, v[{vD+4*oo}:{vD+4*oo+1}] offset:{128*oo}")
    arrive_wait("K2_s2", 16, lambda: a(f"ds_read_b128 v[{vF}:{vF+3}], v{vsr}\nds_read_b128 v[{vF+4}:{vF+7}], v{vsr} offset:{8*OSTR}"))
    stamp(10)
    a(f"""
    s_cmp_ge_u32 s{sw}, 8
    s_mov_b32 s3, {8<<17}
    s_waitcnt lgkmcnt({0 if o.diag else 1})
    buffer_store_dwordx4 v[{vF}:{vF+3}], v{vso}, s[{sO}:{sO+3}], 0 offen {o.k2st}
    s_cbranch_scc1 K2_fin
    s_waitcnt lgkmcnt(0)
    buffer_store_dwordx4 v[{vF+4}:{vF+7}], v{vso}, s[{sO}:{sO+3}], s3 offen {o.k2st}
    K2_fin:
    """)
    if o.diag:
        a("s_waitcnt vmcnt(0)")
        stamp(11)
        a(f"""s_waitcnt lgkmcnt(0)
        s_mov_b64 exec, 1
        s_lshl_b32 s3, s2, 10
        s_add_u32 s3, s3, {WS_TS + 0x40000}
        s_lshl_b32 s{sw}, s{sw}, 6
        s_add_u32 s3, s3, s{sw}
        v_mov_b32 v{vt0}, s3""")
        for i in range(14):
            a(f"v_mov_b32 v{vt1}, s{TS+2*i}\nglobal_store_dword v{vt0}, v{vt1}, s[{sWS}:{sWS+1}] offset:{4*i}")
    a("F_end:\ns_endpgm")

    tagpoll("F_tagA", "F_tagA_ret")
    tagpoll("F_tagD", "F_tagD_ret")
    a(f"""
    F_repoll:
    buffer_load_dwordx2 v[{voffs}:{voffs+1}], v{vpa}, s[{sWS}:{sWS+3}], 0 offen sc1
    s_sub_u32 s{spoll}, s{spoll}, 1
    s_waitcnt vmcnt(0)
    s_cbranch_scc0 F_poll
    s_endpgm
    F_retry:
    """)
    for r in range(NR0 + 1):
        a(f"""
        s_mov_b64 exec, s[{spend+2*r}:{spend+2*r+1}]
        s_cbranch_execz F_retry{r}
        buffer_load_dwordx4 v[{vrec+4*r}:{vrec+4*r+3}], v{vha+r}, s[{sWS}:{sWS+3}], 0 offen sc1
        F_retry{r}:
        """)
    a(f"""
    s_waitcnt vmcnt(0)
    s_sub_u32 s{spoll}, s{spoll}, 1
    s_cbranch_scc0 F_sweep
    s_endpgm
    K2_x1:
    """)
    rload(X1, vb1, vr1, 1)
    a(f"s_mov_b64 s[{spend+2*X1}:{spend+2*X1+1}], s[{smask+2*X1}:{smask+2*X1+1}]\nK2_x1_l:\ns_waitcnt vmcnt(0)")
    pass1(X1)
    a(f"""
    s_mov_b64 exec, s[{spend+2*X1}:{spend+2*X1+1}]
    s_cbranch_execz K2_x1_ok
    buffer_load_dwordx4 v[{vrec+4*X1}:{vrec+4*X1+3}], v{vha+X1}, s[{sWS}:{sWS+3}], 0 offen sc1
    s_sub_u32 s{spoll}, s{spoll}, 1
    s_cbranch_scc0 K2_x1_l
    s_endpgm
    K2_x1_ok:
    s_waitcnt lgkmcnt(0)
    """)
    keyw(X1)
    a(f"""
    s_mov_b64 exec, -1
    s_cmp_le_u32 s{st1}, 8
    s_cbranch_scc1 K2_x1_ret
    s_mov_b64 s[{sfull}:{sfull+1}], -1
    s_branch K2_x1_ret
    K2_setmore:
    v_mov_b32 v{vt0}, {L_FLAG}
    ds_write_b32 v{vt0}, v{vfour} offset:4
    s_branch K2_setmore_ret
    K2_setslow:
    s_mov_b64 exec, -1
    v_mov_b32 v{vt0}, {L_FLAG}
    ds_write_b32 v{vt0}, v{vfour}
    s_branch K2_setslow_ret
    K2_goslow:
    s_cmp_eq_u32 s{sWin}, 16
    s_cbranch_scc1 F_end
    s_movk_i32 s{sWin}, 16
    s_mov_b32 s{scol}, 0x00010001
    s_mov_b32 s{scol+1}, 0x00010001
    s_branch K2_again
    K2_next:
    s_cmp_lg_u32 s{sWin}, 16
    s_cbranch_scc1 K2_advance
    s_lshl_b64 s[{scol}:{scol+1}], s[{scol}:{scol+1}], 1
    s_cmp_lg_u32 s{scol}, 0x00400040
    s_cbranch_scc1 K2_again
    s_cmp_eq_u32 s{smore}, 0
    s_cbranch_scc1 K2_last
    s_mov_b32 s{scol}, 0x00010001
    s_mov_b32 s{scol+1}, 0x00010001
    K2_advance:
    s_add_u32 s{sI0}, s{sI0}, s{sWin}
    K2_again:
    s_nop 7
    s_nop 7
    s_waitcnt vmcnt(0) lgkmcnt(0)
    s_barrier
    s_branch K2_batch
    """)
    return a.text(), nv, 102, lds

def main():
    ap = argparse.ArgumentParser()
    ap.add_argument("-o", default=f"cdna_kernels/{NAME}.s")
    ap.add_argument("--k1ld", default="")
    ap.add_argument("--k2st", default="sc1 nt")
    ap.add_argument("--diag", action="store_true")
    ap.add_argument("--mall", type=int, default=4)
    ap.add_argument("--pth", type=int, default=8)
    ap.add_argument("--na", type=int, default=0)
    ap.add_argument("--tw", type=int, default=0)
    ap.add_argument("--alpha", type=int, default=200)
    o = ap.parse_args()
    k, nv, ns, lds = gen(o)
    hdr = open(f"cdna_kernels/{NAME}.s.ref").read().split("; Override launch")[0]
    kn = f"{NAME}_kernel"
    nv8 = (nv + 7) // 8 * 8
    s = hdr
    if o.diag: s += "; diag: n1=0 n2=12 nw=12 m0=7 fused=1\n"
    s += f"; @launch grid=(256,1,1) block=(768,1,1) lds={lds}\n"
    s += '.amdgcn_target "amdgcn-amd-amdhsa--gfx950"\n.text\n'
    s += f".globl {kn}\n.p2align 8\n.type {kn},@function\n{kn}:\n{k}"
    s += f""".section .rodata,"a"
.p2align 6
.amdhsa_kernel {kn}
  .amdhsa_next_free_vgpr {nv8}
  .amdhsa_next_free_sgpr {ns}
  .amdhsa_accum_offset {nv8}
  .amdhsa_group_segment_fixed_size 0
  .amdhsa_kernarg_size 96
  .amdhsa_user_sgpr_count 2
  .amdhsa_user_sgpr_kernarg_segment_ptr 1
  .amdhsa_system_sgpr_workgroup_id_x 1
.end_amdhsa_kernel
"""
    open(o.o, "w").write(s)
    print(f"wrote {o.o}: vgpr {nv} lds {lds}")

if __name__ == "__main__":
    main()
```

```python
import sys, argparse, re

NAME = "standalone__tensor_product_equiv_equiformer__graph"
NPROD = 256
CHUNK = 2500
RECB = CHUNK // 5 * 64
WS_OFF = NPROD * RECB
WS_END = WS_OFF + NPROD * 2048
WS_TS = 0x1000000

class Asm:
    def __init__(self):
        self.lines = []
    def __call__(self, s):
        for l in s.strip("\n").split("\n"):
            l = l.strip()
            if not l:
                continue
            self.lines.append(l if (l.endswith(":") or l.startswith(".")) else "    " + l)
    def text(self):
        return "\n".join(self.lines) + "\n"

class Regs:
    def __init__(self, start=0):
        self.n = start
    def get(self, cnt=1, align=1):
        self.n = (self.n + align - 1) // align * align
        r = self.n; self.n += cnt
        return r

def dpp_scan(a, v, lanes=64):
    for sh in (1, 2, 4, 8):
        a(f"s_nop 1\nv_add_u32_dpp v{v}, v{v}, v{v} row_shr:{sh} row_mask:0xf bank_mask:0xf")
    if lanes == 64:
        a(f"s_nop 1\nv_add_u32_dpp v{v}, v{v}, v{v} row_bcast:15 row_mask:0xa bank_mask:0xf")
        a(f"s_nop 1\nv_add_u32_dpp v{v}, v{v}, v{v} row_bcast:31 row_mask:0xc bank_mask:0xf")

SD = "dst_sel:DWORD dst_unused:UNUSED_PAD src0_sel:DWORD src1_sel:"

def gen(o):
    a = Asm()
    NPH = 16
    PHC = (NPH << 24) // 10000
    assert (9999 * PHC) >> 24 == NPH - 1 and PHC < 32768
    NT = 768
    NR0 = 6; NR = NR0 + 2; X0 = NR0; X1 = NR0 + 1
    BINE = 52; BINCAP = 48; WREG = 16 * BINE * 4
    TSTR = 1440; OSTR = 528; WSTR = 160
    L_CNT = 0; L_FLAG = 1024; L_KEYS = L_FLAG + 64
    L_COEF = L_KEYS + 12 * WREG
    ZSLOT = NR * NT
    L_ZERO = L_COEF + ZSLOT * 8
    L_T = L_ZERO + 16
    L_END = L_T + 48 * TSTR
    L_W = L_T
    P_ST = L_COEF
    P_HIST = L_KEYS + 8192; P_BASE = P_HIST + 1024
    lds = L_END
    assert 4 * WREG >= 16 * OSTR and 16 * BINCAP + 64 <= 16 * BINE
    assert lds <= 163840 and lds <= 131072 + L_COEF and L_KEYS % 16 == 0 and L_T % 16 == 0 and L_COEF % 16 == 0
    assert P_ST + RECB <= L_ZERO and 320 * WSTR <= 48 * TSTR
    DUMMY = (ZSLOT << 16) | 0xFFFF
    ZM = 0x003fc000

    V = Regs(1)
    vt0 = V.get(); vt1 = V.get(); vt2 = V.get()
    voffs = V.get(); vt3 = V.get()
    vA = V.get(4, 2)
    vbase, vrem, vb1, vr1 = vA, vA + 1, vA + 2, vA + 3
    vKT = vt1
    vpb = V.get(); vi16 = V.get(); vslot = V.get(); vfour = V.get(); vcidx = V.get(); vpa = V.get()
    vlo4 = V.get(); vKc = V.get(); vidx = V.get(); vka = V.get(); vkt = V.get()
    vacc = V.get(64, 2)
    vW = V.get(40, 2)
    vB = V.get(32, 2)
    vK = V.get(8, 2)
    vpf = V.get(); vpg = V.get()
    vrec = vB; vha = vK
    vra = vpb; voa = vi16; vwa = vslot; vwb = vcidx; vsr = vpa; vso = vt3
    nv = V.n
    assert nv <= 168 and vt1 % 2 == 0 and voffs % 2 == 0, nv

    sRH = 4; sEA = 6; sSRC = 8; sDST = 10; sWR = 12; sW0 = 14; sW1 = 16; sDBG = 18
    spend = 4
    sX = 20; sO = 24; sWS = 28
    scap = 32; sw = 33; sI0 = 34; sWin = 35; sn = 36; s512 = 37; st0 = 38; st1 = 39; sM = 40; stot = 41; sq = 42; snonce = 43
    smask = 44; sovf = 60; sgk = 60; smore = 62; scol = 64; spoll = 66; sfirst = 67; sHI = 68; sPH = 69; sZ = 69
    s4100 = 64; s800 = 65; stmp = 70; sfull = 72
    TS = 74; sthr = 4; s5th = 1
    PB = max(0, -(-(40000 - 2048 * o.nl2 - 256 * o.na) // 256))
    nst = [0]
    def stamp(i):
        if o.diag:
            a(f"s_memrealtime s[{TS+2*i}:{TS+2*i+1}]")
    def clk(i):
        if o.diag:
            a(f"s_memtime s[{TS+24+2*i}:{TS+25+2*i}]")
    ld = o.k1ld
    stamp(0)
    a(f"""
    s_cmp_ge_u32 s2, 256
    s_cbranch_scc1 F_end
    s_load_dwordx8 s[{sRH}:{sRH+7}], s[0:1], 8
    s_load_dwordx4 s[{sWR}:{sWR+3}], s[0:1], 40
    s_load_dwordx2 s[{sW1}:{sW1+1}], s[0:1], 56
    s_load_dwordx2 s[{sDBG}:{sDBG+1}], s[0:1], 80
    s_load_dwordx2 s[{sX}:{sX+1}], s[0:1], 0
    s_load_dwordx2 s[{sO}:{sO+1}], s[0:1], 72
    s_load_dwordx2 s[{sWS}:{sWS+1}], s[0:1], 88
    s_getpc_b64 s[{sovf}:{sovf+1}]
    F_pc:
    v_lshlrev_b32 v{vt1}, 7, v0
    v_cmp_gt_u32 vcc, F_end-F_pc, v{vt1}
    s_and_saveexec_b64 s[{smore}:{smore+1}], vcc
    s_cbranch_execz F_notouch
    global_load_dword v{vpf}, v{vt1}, s[{sovf}:{sovf+1}]
    F_notouch:
    s_mov_b64 exec, s[{smore}:{smore+1}]
    v_lshrrev_b32 v{vt0}, 6, v0
    s_mul_i32 s3, s2, {CHUNK*4}
    v_readfirstlane_b32 s{sw}, v{vt0}
    s_mov_b32 s{sWS+2}, {WS_END}
    s_mov_b32 s{sWS+3}, 0x20000
    s_mov_b32 s{sX+2}, 5120000
    s_mov_b32 s{sX+3}, 0x20000
    s_mov_b32 s{sO+2}, 5120000
    s_mov_b32 s{sO+3}, 0x20000
    s_and_b32 s{st1}, s2, 7
    s_lshl_b32 s{st1}, s{st1}, 5
    s_lshr_b32 s{st0}, s2, 3
    s_or_b32 s{st1}, s{st1}, s{st0}
    s_lshr_b32 s{sn}, s{st1}, 2
    s_lshl_b32 s{sn}, s{sn}, 4
    s_bfe_u32 s{st0}, s{st1}, 0x10001
    s_lshl_b32 s{st0}, s{st0}, 10
    s_add_u32 s{sn}, s{sn}, s{st0}
    s_and_b32 s{st0}, s{st1}, 1
    s_lshl_b32 s{st0}, s{st0}, 3
    s_add_u32 s{sn}, s{sn}, s{st0}
    s_add_u32 s{sn}, s{sn}, {WS_OFF}
    s_cmp_ge_u32 s{sw}, 10
    s_cbranch_scc1 F_helper
    """)
    pso = vacc + 53; pla = vacc + 57
    def early():
        a(f"""
        v_and_b32 v{vt1}, 15, v0
        v_lshrrev_b32 v{vt0}, 4, v0
        v_mad_u32_u24 v{vt0}, v{vt1}, 48, v{vt0}
        v_lshl_add_u32 v{vpa}, v{vt0}, 11, s{sn}
        v_mov_b32 v{voffs}, 0
        v_cmp_gt_u32 s[{smask}:{smask+1}], s{sWS+2}, v{vpa}
        s_mul_i32 s3, s2, {RECB}
        v_lshl_add_u32 v{pso}, v0, 4, s3
        v_add_u32 v{pso+1}, {NT*16}, v{pso}
        v_add_u32 v{pso+2}, {2*NT*16}, v{pso}
        v_lshlrev_b32 v{pla}, 4, v0
        v_add_u32 v{pla}, {P_ST}, v{pla}
        s_movk_i32 s3, {RECB//16 - 2*NT}
        v_cmp_gt_u32 s[{sfull}:{sfull+1}], s3, v0
        s_mov_b32 s{stmp}, 0x88888888
        s_mov_b32 s{stmp+1}, 0x88888888
        """)
    P = vacc
    pD = P; pS = P + 4; pE = P + 8; pR0 = P + 10; pR1 = P + 14; pH = P + 18; pRk = P + 22; pRec = P + 26
    pa0 = P + 42; pa1 = P + 43; pa2 = P + 44; p16 = P + 45; pT = P + 46
    pw0 = P + 50; pw1 = P + 51; pl = P + 52
    wraw = vW; wsc = vW + 16; wtmp = vW + 20; wad = vW + 28
    def unpack(dst, src, hi):
        a(f"v_and_b32 v{dst}, s{sHI}, v{src}" if hi else f"v_lshlrev_b32 v{dst}, 16, v{src}")
    a(f"""
    v_lshl_add_u32 v{pa0}, v0, 4, s3
    v_cmp_gt_u32 vcc, {CHUNK//4}, v0
    v_lshrrev_b32 v{pa1}, 1, v{pa0}
    v_add_u32 v{pa2}, v{pa0}, v{pa1}
    s_mov_b64 exec, vcc
    s_waitcnt lgkmcnt(0)
    global_load_dwordx4 v[{pD}:{pD+3}], v{pa0}, s[{sDST}:{sDST+1}] {ld}
    s_barrier
    global_load_dwordx4 v[{pS}:{pS+3}], v{pa0}, s[{sSRC}:{sSRC+1}] {ld}
    global_load_dwordx2 v[{pE}:{pE+1}], v{pa1}, s[{sEA}:{sEA+1}] {ld}
    global_load_dwordx3 v[{pR0}:{pR0+2}], v{pa2}, s[{sRH}:{sRH+1}] {ld}
    global_load_dwordx3 v[{pR1}:{pR1+2}], v{pa2}, s[{sRH}:{sRH+1}] offset:12 {ld}
    s_mov_b64 exec, -1
    v_and_b32 v{pl}, 63, v0
    s_cmp_lt_u32 s{sw}, 4
    s_cselect_b32 s{sW0}, s{sW0}, s{sW1}
    s_cselect_b32 s{sW0+1}, s{sW0+1}, s{sW1+1}
    s_cselect_b32 s{st0}, 0, 4
    s_sub_u32 s{st0}, s{sw}, s{st0}
    s_lshl_b32 s{st0}, s{st0}, 12
    v_lshl_add_u32 v{pw0}, v{pl}, 4, s{st0}
    v_lshrrev_b32 v{pw1}, 3, v{pl}
    s_lshl_b32 s{st0}, s{sw}, 5
    v_add_lshl_u32 v{pw1}, v{pw1}, s{st0}, 1
    """)
    early()
    a(f"""
    v_mov_b32 v{p16}, 1
    s_mov_b32 s{sHI}, 0xffff0000
    s_movk_i32 s{sPH}, {PHC}
    s_movk_i32 s{s4100}, 0x4100
    s_movk_i32 s{s800}, 0x800
    s_mov_b64 exec, vcc
    s_waitcnt vmcnt(4)
    """)
    stamp(1)
    for i in range(4):
        a(f"v_lshlrev_b32_sdwa v{pH+i}, 2, v{pD+i} {SD}BYTE_0")
        a(f"ds_add_rtn_u32 v{pRk+i}, v{pH+i}, v{p16} offset:{P_HIST}")
    a("s_waitcnt lgkmcnt(0)\ns_barrier")
    for i in (1, 3):
        a(f"v_lshrrev_b32 v{pT}, 2, v{pD+i}\nv_and_or_b32 v{pD+i}, v{pT}, s{s800}, v{pD+i}")
    for i in range(4):
        a(f"v_mul_u32_u24_sdwa v{pD+i}, s{s4100}, v{pD+i} {SD}BYTE_1")
    for i in range(4):
        a(f"v_and_b32 v{pD+i}, 0xfc00, v{pD+i}          ; (l&3)<<14 | (l>>2)<<10")
    a("s_barrier")
    for i in range(4):
        a(f"ds_read_b32 v{pH+i}, v{pH+i} offset:{P_BASE}")
    a(f"s_waitcnt lgkmcnt(0)\ns_load_dword s{snonce}, s[{sDBG}:{sDBG+1}], 0")
    a(f"s_mov_b32 s3, {P_ST}")
    for i in range(4):
        a(f"""
        v_add_u32 v{pH+i}, v{pH+i}, v{pRk+i}
        v_mul_u32_u24 v{pT}, 52429, v{pH+i}
        v_lshrrev_b32 v{pT}, 18, v{pT}
        v_mad_u32_u24 v{pH+i}, v{pH+i}, 3, v{pT}
        v_lshl_add_u32 v{pH+i}, v{pH+i}, 2, s3
        """)
    a("s_waitcnt vmcnt(3)")
    for i in range(4):
        k = pRec + 4 * i + 2
        a(f"v_mul_u32_u24 v{k}, s{sPH}, v{pS+i}")
        a(f"v_lshlrev_b32_sdwa v{k}, 6, v{k} {SD}BYTE_3")
        a(f"v_or_b32 v{k}, v{k}, v{pD+i}")
        a(f"v_lshl_or_b32 v{k}, v{k}, 16, v{pS+i}")
        if not o.b96: a(f"ds_write_b32 v{pH+i}, v{k} offset:8")
    for i in range(4):
        if i == 0: a("s_waitcnt vmcnt(1)")
        if i == 2:
            a("s_waitcnt vmcnt(0)")
            stamp(2)
        R = pR0 if i < 2 else pR1
        c = pRec + 4 * i
        unpack(pT, pE + i // 2, i & 1)
        for j in range(3):
            el = 3 * (i & 1) + j
            unpack(pT + 1 + j, R + el // 2, el & 1)
        for j in range(3):
            a(f"v_mul_f32 v{pT+1+j}, v{pT}, v{pT+1+j}")
        a(f"v_cvt_pk_bf16_f32 v{c}, v{pT}, v{pT+1}")
        a(f"v_cvt_pk_bf16_f32 v{c+1}, v{pT+2}, v{pT+3}")
        a(f"ds_write_b96 v{pH+i}, v[{c}:{c+2}]" if o.b96 else f"ds_write2_b32 v{pH+i}, v{c}, v{c+1} offset0:0 offset1:1")
    a("s_mov_b64 exec, -1")
    for j in range(4):
        a(f"global_load_dwordx4 v[{wraw+4*j}:{wraw+4*j+3}], v{pw0}, s[{sW0}:{sW0+1}] offset:{1024*j}")
    for j in range(4):
        a(f"global_load_ushort v{wsc+j}, v{pw1}, s[{sWR}:{sWR+1}] offset:{16*j}")
    a(f"""
    s_waitcnt lgkmcnt(0)
    s_cmp_eq_u32 s{snonce}, 0
    s_cbranch_scc1 F_tagA
    F_out:
    s_barrier
    """)
    stamp(3)
    for j in range(3):
        a(f"ds_read_b128 v[{P+4*j}:{P+4*j+3}], v{pla} offset:{NT*16*j}")
    a(f"""
    v_mov_b32 v{pT}, s{snonce}
    """)
    for j in range(3):
        if j == 2: a(f"s_mov_b64 exec, s[{sfull}:{sfull+1}]\ns_cbranch_execz F_out2")
        a(f"s_waitcnt lgkmcnt({2-j})\nv_cndmask_b32 v{P+4*j+3}, v{P+4*j+3}, v{pT}, s[{stmp}:{stmp+1}]\nglobal_store_dwordx4 v{pso+j}, v[{P+4*j}:{P+4*j+3}], s[{sWS}:{sWS+1}] sc1")
    a(f"""
    F_out2:
    s_mov_b64 exec, s[{smask}:{smask+1}]
    buffer_load_dwordx2 v[{voffs}:{voffs+1}], v{vpa}, s[{sWS}:{sWS+3}], 0 offen sc1
    s_mov_b64 exec, -1
    s_waitcnt lgkmcnt(0)
    """)
    def wbuild():
        a(f"""
        s_cmp_eq_u32 s{sfirst}, 0
        s_cbranch_scc1 F_wdone
        s_cmp_ge_u32 s{sw}, 10
        s_cbranch_scc1 F_wdone
        v_bfe_u32 v{wad}, v0, 3, 3
        s_mul_i32 s3, s{sw}, {32*WSTR}
        s_add_u32 s3, s3, {L_W}
        v_mul_u32_u24 v{wad}, {WSTR}, v{wad}
        v_and_b32 v{wtmp}, 7, v0
        v_lshl_add_u32 v{wtmp}, v{wtmp}, 4, s3
        v_add_u32 v{wad}, v{wad}, v{wtmp}
        {'s_waitcnt vmcnt(3)' if o.wb == 0 else ''}
        """)
        for j in range(4):
            a(f"v_lshlrev_b32 v{wsc+j}, 16, v{wsc+j}")
            for i in range(8):
                unpack(wtmp + i, wraw + 4 * j + i // 2, i & 1)
            for i in range(8):
                a(f"v_mul_f32 v{wtmp+i}, v{wsc+j}, v{wtmp+i}")
            for i in range(4):
                a(f"v_cvt_pk_bf16_f32 v{wraw+4*j+i}, v{wtmp+2*i}, v{wtmp+2*i+1}")
            a(f"ds_write_b128 v{wad}, v[{wraw+4*j}:{wraw+4*j+3}] offset:{8*j*WSTR}")
        a("F_wdone:")
    a(f"""
    F_init:
    v_mov_b32 v{vfour}, 4
    s_movk_i32 s{s512}, 512
    s_mov_b32 s{sI0}, 0
    s_movk_i32 s{sWin}, 32
    s_mov_b32 s{s5th}, 0x33333334
    s_movk_i32 s{scap}, {BINCAP*4}
    s_mov_b64 s[{scol}:{scol+1}], -1
    s_mov_b32 s{sM}, 0xc000ffff
    s_mov_b32 s{sZ}, 0x{ZM:x}
    s_mov_b32 s{sfirst}, 1
    v_and_b32 v{vt0}, 31, v0
    v_lshlrev_b32 v{vlo4}, 2, v{vt0}
    v_and_b32 v{vt2}, 3, v0
    v_lshlrev_b32 v{vt0}, 17, v{vt2}
    v_sub_u32 v{vKc}, {L_COEF}, v{vt0}
    v_bfe_u32 v{vt0}, v0, 4, 1
    v_mul_u32_u24 v{vt0}, 0x5555, v{vt0}
    v_add_u32 v{vidx}, 0x8888, v{vt0}
    """)
    for i in range(64): a(f"v_mov_b32 v{vacc+i}, 0")
    a(f"""
    K2_batch:
    v_and_b32 v{vt1}, 15, v0
    v_lshrrev_b32 v{vt0}, 4, v0
    v_mad_u32_u24 v{vt0}, v{vt1}, 48, v{vt0}
    v_mul_u32_u24 v{vpb}, {CHUNK}, v{vt0}
    v_mov_b32 v{vi16}, v{vt1}
    v_lshlrev_b32 v{vslot}, 3, v0
    v_add_u32 v{vslot}, {L_COEF}, v{vslot}
    s_lshl_b32 s3, s{sw}, 4
    v_add_lshl_u32 v{vcidx}, v{vt1}, s3, 2
    s_mul_i32 s{st0}, s{sw}, {WREG}
    s_add_u32 s{st0}, s{st0}, {L_KEYS}
    v_bfe_u32 v{vt0}, v0, 5, 1
    v_lshl_add_u32 v{vka}, v{vt0}, 4, s{st0}
    v_lshl_add_u32 v{vkt}, v{vt0}, 5, s{st0}
    v_and_b32 v{vt0}, 12, v0
    v_add_u32 v{vkt}, v{vkt}, v{vt0}
    v_lshlrev_b32 v{vt0}, 2, v0
    v_min_u32 v{vt0}, {L_KEYS-4}, v{vt0}
    v_mov_b32 v{vt1}, 0
    v_mov_b32 v{vt2}, 0
    ds_write_b32 v{vt0}, v{vt1} offset:{L_CNT}
    v_mov_b32 v{vt0}, {L_ZERO}
    ds_write_b64 v{vt0}, v[{vt1}:{vt2}]
    v_lshl_add_u32 v{vt0}, v{vi16}, 2, s{st0}
    v_mov_b32 v{vt1}, 0x{DUMMY:x}
    ds_write_b32 v{vt0}, v{vt1}
    s_mov_b32 s{spoll}, 0x40000
    s_mov_b64 s[{sfull}:{sfull+1}], 0
    """)
    if o.wb == 0: wbuild()
    a(f"""
    s_waitcnt vmcnt(0) lgkmcnt(0)
    {'s_barrier' if o.pre == 0 else ''}
    """)
    if o.pre == 0: stamp(4)
    a(f"""
    s_cmp_eq_u32 s{sfirst}, 0
    s_cbranch_scc1 F_polled
    s_mov_b64 exec, s[{smask}:{smask+1}]
    F_poll:
    v_cmp_ne_u32 vcc, s{snonce}, v{voffs+1}
    s_and_b64 exec, exec, vcc
    s_cbranch_scc1 F_repoll
    s_mov_b64 exec, -1
    F_polled:
    """)
    stamp(5)
    a(f"""
    v_and_b32 v{vt0}, 0xffff, v{voffs}
    v_lshrrev_b32 v{vt1}, 16, v{voffs}
    v_add3_u32 v{vbase}, v{vpb}, v{vt0}, s{sI0}
    v_subrev_u32 v{vt1}, s{sI0}, v{vt1}
    v_min_i32 v{vrem}, s{sWin}, v{vt1}
    v_cndmask_b32 v{vrem}, 0, v{vrem}, s[{scol}:{scol+1}]
    v_cmp_lt_i32 s[{smore}:{smore+1}], s{sWin}, v{vt1}
    """)
    def ovf():
        a(f"""
    v_subrev_u32 v{vr1}, 16, v{vrem}
    v_add_u32 v{vb1}, 16, v{vbase}
    v_cmp_lt_i32 s[{sovf}:{sovf+1}], 0, v{vr1}
    v_lshlrev_b32 v{vpa}, 16, v0
    v_mov_b32 v{vt2}, 60
    v_mbcnt_lo_u32_b32 v{vt0}, s{sovf}, 0
    v_mbcnt_hi_u32_b32 v{vt0}, s{sovf+1}, v{vt0}
    v_and_b32 v{vt1}, 3, v{vt0}
    v_and_b32 v{vt0}, 28, v{vt0}
    v_lshl_add_u32 v{vt0}, v{vt1}, 6, v{vt0}
    v_cndmask_b32 v{vt0}, v{vt2}, v{vt0}, s[{sovf}:{sovf+1}]
    ds_permute_b32 v{vb1}, v{vt0}, v{vb1}
    ds_permute_b32 v{vr1}, v{vt0}, v{vr1}
    """)
    if o.pre: ovf()
    def raddr(r, b, rm, col):
        a(f"""
        v_add_u32_dpp v{vha+r}, v{b}, v{vi16} row_newbcast:{col} row_mask:0xf bank_mask:0xf
        v_sub_u32_dpp v{vt0}, v{rm}, v{vi16} row_newbcast:{col} row_mask:0xf bank_mask:0xf
        v_mul_hi_u32 v{vt1}, v{vha+r}, s{s5th}
        v_cmp_lt_i32 s[{smask+2*r}:{smask+2*r+1}], 0, v{vt0}
        v_mad_u32_u24 v{vha+r}, v{vha+r}, 3, v{vt1}
        v_lshlrev_b32 v{vha+r}, 2, v{vha+r}                ; 12*g + 4*(g/5)
        v_or_b32 v{vrec+4*r+3}, 60, v{vha+r}
        """)
    def tagload(r):
        a(f"s_or_b64 exec, s[{smask+2*r}:{smask+2*r+1}], 1\nbuffer_load_dword v{vrec+4*r+3}, v{vrec+4*r+3}, s[{sWS}:{sWS+3}], 0 offen {o.recld}")
    def dataload(r):
        a(f"s_or_b64 exec, s[{smask+2*r}:{smask+2*r+1}], 1")
        a(f"buffer_load_dwordx3 v[{vrec+4*r}:{vrec+4*r+2}], v{vha+r}, s[{sWS}:{sWS+3}], 0 offen {o.recld}")
    def recload(r, first=False):
        pol = o.recld if first else "sc1"
        if first: a(f"s_or_b64 exec, s[{smask+2*r}:{smask+2*r+1}], 1")
        else: a(f"v_or_b32 v{vrec+4*r+3}, 60, v{vha+r}")
        a(f"""
        buffer_load_dword v{vrec+4*r+3}, v{vrec+4*r+3}, s[{sWS}:{sWS+3}], 0 offen {pol}
        buffer_load_dwordx3 v[{vrec+4*r}:{vrec+4*r+2}], v{vha+r}, s[{sWS}:{sWS+3}], 0 offen {pol}
        """)
    def rload(r, b, rm, col):
        raddr(r, b, rm, col); recload(r, True); a("s_mov_b64 exec, -1")
    pr = [int(c) for c in o.rprio] if o.rprio else None
    def prio(i):
        if pr: a(f"s_setprio {pr[i]}")
    if o.tf:
        if o.pre:
            for r in range(6): raddr(r, vbase, vrem, r)
            a("s_waitcnt lgkmcnt(0)\ns_nop 1")
            raddr(X0, vb1, vr1, 0)
            prio(0)
            a("s_barrier")
            stamp(4)
            for r in range(5): tagload(r)
        else:
            prio(0)
            for r in range(5):
                raddr(r, vbase, vrem, r); tagload(r); a("s_mov_b64 exec, -1")
                if r == 0: ovf()
            a(f"s_mov_b64 s[{smask+10}:{smask+11}], 0\ns_mov_b64 s[{smask+2*X0}:{smask+2*X0+1}], 0")
        prio(1)
        a(f"s_cmp_ge_u32 s{sw}, 4\ns_cbranch_scc1 F_nor5")
        if o.pre: recload(5, True)
        else: rload(5, vbase, vrem, 5)
        a(f"F_nor5:\ns_bcnt1_i32_b64 s{st1}, s[{sovf}:{sovf+1}]\ns_cbranch_scc0 F_nox0")
        if o.pre: recload(X0, True)
        else:
            a("s_waitcnt lgkmcnt(0)\ns_nop 1"); rload(X0, vb1, vr1, 0)
        a("F_nox0:")
        for r in range(5): dataload(r)
    elif o.pre:
        for r in range(6): raddr(r, vbase, vrem, r)
        a("s_waitcnt lgkmcnt(0)\ns_nop 1")
        raddr(X0, vb1, vr1, 0)
        prio(0)
        a(f"s_cmp_ge_u32 s{sw}, 4\ns_barrier")
        stamp(4)
        a("s_cbranch_scc1 F_nor5")
        recload(5, True)
        a("F_nor5:")
        a(f"s_bcnt1_i32_b64 s{st1}, s[{sovf}:{sovf+1}]\ns_cbranch_scc0 F_nox0")
        recload(X0, True)
        a("F_nox0:")
        for r in range(5):
            if r: prio(r)
            recload(r, True)
    else:
        prio(0)
        rload(0, vbase, vrem, 0)
        ovf()
        a(f"s_mov_b64 s[{smask+10}:{smask+11}], 0\ns_cmp_ge_u32 s{sw}, 4\ns_cbranch_scc1 F_nor5")
        rload(5, vbase, vrem, 5)
        a("F_nor5:")
        a(f"s_mov_b64 s[{smask+2*X0}:{smask+2*X0+1}], 0\ns_bcnt1_i32_b64 s{st1}, s[{sovf}:{sovf+1}]\ns_cbranch_scc0 F_nox0\ns_waitcnt lgkmcnt(0)\ns_nop 1")
        rload(X0, vb1, vr1, 0)
        a("F_nox0:")
        for r in range(1, 5):
            prio(r)
            rload(r, vbase, vrem, r)
    prio(5)
    if o.f2: stamp(1)
    a(f"""
    s_mov_b64 exec, -1
    s_cmp_gt_u32 s{st1}, 4
    s_cbranch_scc1 K2_x1
    K2_x1_ret:
    s_cmp_lg_u64 s[{smore}:{smore+1}], 0
    s_cbranch_scc1 K2_setmore
    K2_setmore_ret:
    """)
    if o.wb == 2: wbuild()
    a(f"s_mov_b32 s{sfirst}, 0")
    for r in range(NR0 + 1):
        a(f"s_mov_b64 s[{spend+2*r}:{spend+2*r+1}], s[{smask+2*r}:{smask+2*r+1}]")
    def pass1(r):
        k = vrec + 4 * r + 2
        a(f"""
        s_mov_b64 exec, s[{spend+2*r}:{spend+2*r+1}]
        v_and_or_b32 v{vt0}, v{k}, s{sZ}, v{k+1}
        v_cmpx_eq_u32 vcc, s{snonce}, v{vt0}
        v_bfe_u32 v{vha+r}, v{k}, 20, 10
        v_add_u32 v{vt0}, {(r*NT) << 16}, v{vpa}
        s_andn2_b64 s[{spend+2*r}:{spend+2*r+1}], s[{spend+2*r}:{spend+2*r+1}], exec
        ds_add_rtn_u32 v{k+1}, v{vha+r}, v{vfour} offset:{L_CNT}
        ds_write_b64 v{vslot}, v[{k-2}:{k-1}] offset:{r*NT*8}
        v_and_or_b32 v{k}, v{k}, s{sM}, v{vt0}
        """)
    def keyw(r):
        k = vrec + 4 * r + 2
        a(f"""
        s_andn2_b64 s[{stmp}:{stmp+1}], s[{smask+2*r}:{smask+2*r+1}], s[{spend+2*r}:{spend+2*r+1}]
        s_mov_b64 exec, s[{stmp}:{stmp+1}]
        v_cmpx_gt_u32 vcc, s{scap}, v{k+1}
        v_mad_u32_u24 v{vt1}, v{vha+r}, {BINE}, v{k+1}
        s_xor_b64 s[{stmp}:{stmp+1}], s[{stmp}:{stmp+1}], exec
        ds_write_b32 v{vt1}, v{k} offset:{L_KEYS}
        s_or_b64 s[{sfull}:{sfull+1}], s[{sfull}:{sfull+1}], s[{stmp}:{stmp+1}]
        """)
    a("F_sweep:")
    done = []; wr = []
    for r in range(5):
        sync = str(r) in o.kw
        a(f"s_waitcnt vmcnt({(1 if o.tf else 2)*(4-r)})" + (" lgkmcnt(0)" if sync else ""))
        if o.f2 and r == 0: stamp(5)
        if o.f2 and r == 4: stamp(2)
        now = ([5, X0] if r == 0 else []) + [r]
        for x in now: pass1(x)
        if sync:
            for x in done: keyw(x)
            done = []
        done += now
    a(f"s_or_b64 s[{sovf}:{sovf+1}], s[{spend}:{spend+1}], s[{spend+2}:{spend+3}]")
    for r in range(2, NR0 + 1):
        a(f"s_or_b64 s[{sovf}:{sovf+1}], s[{sovf}:{sovf+1}], s[{spend+2*r}:{spend+2*r+1}]")
    a("s_cbranch_scc1 F_retry")
    if o.mall == 4:
        a(f"s_cmp_eq_u32 s{sw}, 11\ns_cbranch_scc1 F_prefetch\nF_prefetched:")
    a("s_waitcnt lgkmcnt(0)")
    for r in done: keyw(r)
    a(f"""
    s_cbranch_scc1 K2_setslow
    K2_setslow_ret:
    s_mov_b64 exec, -1
    v_and_b32 v{vt3}, 63, v0
    v_lshl_add_u32 v{vt3}, v{vt3}, 2, s{st0}
    v_mov_b32 v{vA}, {L_FLAG}
    s_waitcnt lgkmcnt(0)
    {f's_memrealtime s[{TS+6}:{TS+7}]' if o.f2 else ''}
    s_barrier
    """)
    stamp(6)
    if o.mall == 3:
        a(f"s_cmp_eq_u32 s{sw}, 11\ns_cbranch_scc1 F_prefetch\nF_prefetched:")
    vE = vW; c0 = vW + 16; c1 = vW + 17; c2 = vW + 18; c3 = vW + 19
    a(f"""
    s_cmp_lt_u32 s{sw}, {o.dw}
    s_cselect_b32 s{sn}, 64, 0
    s_cbranch_scc1 F_first
    F_compact:
    ds_read_b32 v{c0}, v{vcidx} offset:{L_CNT}
    ds_read_b64 v[{vA}:{vA+1}], v{vA}
    """)
    for j in range(1, 16):
        a(f"ds_read_b32 v{vE+j}, v{vt3} offset:{j*BINE*4}")
        if j == 13:
            a(f"""
            s_mov_b32 exec_lo, 0x00010001
            s_mov_b32 exec_hi, 0x00010001
            s_waitcnt lgkmcnt(13)
            v_max_u32 v{c0}, s{sn}, v{c0}
            s_mov_b64 exec, -1
            v_mov_b32 v{c1}, v{c0}
            """)
    a(f"""
    v_readfirstlane_b32 s{st1}, v{vA}
    v_readfirstlane_b32 s{smore}, v{vA+1}
    """)
    dpp_scan(a, c1, 16)
    a(f"""
    s_cmp_lg_u32 s{st1}, 0
    s_cbranch_scc1 K2_goslow
    v_readlane_b32 s{stot}, v{c1}, 15
    v_sub_u32 v{c1}, v{c1}, v{c0}
    v_mov_b32 v{vA}, 0x{DUMMY:x}
    s_mov_b32 exec_hi, 0xffff
    v_add_u32 v{vA+1}, s{stot}, v{vt3}
    s_waitcnt lgkmcnt(0)
    """)
    for j in range(1, 16):
        t = c2 if j & 1 else c3
        a(f"v_add_u32_dpp v{t}, v{c1}, v{vt3} row_newbcast:{j} row_mask:0xf bank_mask:0xf\nds_write_b32 v{t}, v{vE+j}")
    a(f"""
    ds_write_b32 v{vA+1}, v{vA}
    s_mov_b64 exec, -1
    s_sub_i32 s{sn}, s{stot}, 64
    s_mul_i32 s{sq}, s{stot}, {o.pth}
    s_lshr_b32 s{sq}, s{sq}, 4
    s_cmp_lt_u32 s{sw}, {o.dw}
    s_cbranch_scc1 F_wfrag
    """)
    def keys_read():
        a(f"""
        ds_read_b128 v[{vK}:{vK+3}], v{vka}
        ds_read_b128 v[{vK+4}:{vK+7}], v{vka} offset:32
        ds_read2_b32 v[{vKT}:{vKT+1}], v{vkt} offset0:0 offset1:4
        v_add_u32 v{vka}, 64, v{vka}
        v_add_u32 v{vkt}, 64, v{vkt}
        """)
    def addr_calc():
        for r in range(8):
            a(f"v_mad_u32_u16 v{vK+r}, v{vK+r}, s{s512}, v{vlo4}")
        for r in range(2):
            a(f"v_mad_u32_u16 v{vKT+r}, v{vKT+r}, 8, v{vKc} op_sel:[1,0,0,0]")
    def row_loads(r0, r1):
        for r in range(r0, r1):
            for q in range(4):
                a(f"buffer_load_dword v{vB+8*q+r}, v{vK+r}, s[{sX}:{sX+3}], 0 offen offset:{128*q}")
    a(f"""
    s_cmp_eq_u32 s{stot}, 0
    s_cbranch_scc1 F_wfrag
    F_first:
    s_setprio 3
    """)
    stamp(7); clk(0)
    keys_read()
    a("s_waitcnt lgkmcnt(0)")
    addr_calc()
    row_loads(0, 8)
    a(f"""
    s_cmp_lt_u32 s{sw}, {o.dw}
    s_cbranch_scc1 F_compact
    F_wfrag:
    v_bfe_u32 v{vA}, v0, 4, 2                      ; g
    v_bfe_u32 v{vA+1}, v0, 2, 2                    ; r
    v_lshl_add_u32 v{vA+2}, v{vA}, 3, v{vA+1}      ; 8g + r
    v_bfe_u32 v{vA+1}, v0, 2, 1
    v_lshl_add_u32 v{vA}, v{vA}, 2, v{vA+1}
    v_bfe_u32 v{vA+1}, v0, 3, 1
    v_lshl_add_u32 v{vA}, v{vA+1}, 6, v{vA}        ; 4g + (r&1) + 64(r>>1)
    s_and_b32 s3, s{sw}, 3
    s_lshl_b32 s3, s3, 5
    s_add_u32 s3, s3, {L_W}
    v_and_b32 v{vA+1}, 3, v0
    v_lshl_add_u32 v{vA+1}, v{vA+1}, 3, s3
    s_movk_i32 s3, {WSTR}
    v_mad_u32_u24 v{vA}, v{vA}, s3, v{vA+1}
    v_mad_u32_u24 v{vA+2}, v{vA+2}, s3, v{vA+1}
    """)
    for f in range(10):
        for tt in range(2):
            if f < 8: ad, off = vA, (128 * (f >> 2) + 16 * (f & 3) + 2 * tt) * WSTR
            else: ad, off = vA + 2, (256 + 32 * (f - 8) + 4 * tt) * WSTR
            a(f"ds_read_b64_tr_b16 v[{vW+4*f+2*tt}:{vW+4*f+2*tt+1}], v{ad} offset:{off}")
    a(f"""
    v_and_b32 v{vt0}, 15, v0
    v_bfe_u32 v{vt3}, v0, 4, 2
    s_lshr_b32 s{st0}, s{sw}, 2
    s_mul_i32 s3, s{st0}, {16*TSTR}
    s_add_u32 s3, s3, {L_T}
    v_mul_u32_u24 v{vra}, {TSTR}, v{vt0}
    v_lshl_add_u32 v{vra}, v{vt3}, 4, v{vra}
    v_add_u32 v{vra}, s3, v{vra}
    s_mul_i32 s{sgk}, s{st0}, {4*WREG}
    s_add_u32 s{sgk}, s{sgk}, {L_KEYS}
    s_and_b32 s{st1}, s{sw}, 3
    s_lshl_b32 s3, s{st1}, 5
    s_add_u32 s3, s3, s{sgk}
    v_mul_u32_u24 v{voa}, {OSTR}, v{vt0}
    v_lshl_add_u32 v{voa}, v{vt3}, 3, v{voa}
    v_add_u32 v{voa}, s3, v{voa}
    s_mul_i32 s3, s{sw}, {4*TSTR}
    s_add_u32 s3, s3, {L_T}
    v_bfe_u32 v{vt0}, v0, 5, 1
    v_mul_u32_u24 v{vt3}, {TSTR}, v{vt0}
    v_add3_u32 v{vwb}, v{vt3}, v{vlo4}, s3
    v_add_u32 v{vwa}, v{vwb}, v{vlo4}
    s_mul_i32 s3, s{st1}, {2*OSTR}
    s_add_u32 s3, s3, s{sgk}
    v_mul_u32_u24 v{vt3}, {OSTR}, v{vt0}
    v_lshl_add_u32 v{vt3}, v{vlo4}, 2, v{vt3}
    v_add_u32 v{vsr}, s3, v{vt3}
    s_lshl_b32 s3, s{st0}, 3
    s_add_u32 s3, s3, s{st1}
    s_lshl_b32 s3, s3, 9
    s_add_u32 s3, s3, s2
    s_lshl_b32 s3, s3, 9
    v_lshl_add_u32 v{vt3}, v{vlo4}, 2, s3
    v_lshl_add_u32 v{vso}, v{vt0}, 17, v{vt3}
    s_lshl_b32 s{sgk}, s{st0}, 2
    s_add_u32 s{sgk}, s{sgk}, {L_FLAG+16}
    v_mov_b32 v{vt0}, {L_FLAG+8}
    s_mov_b64 exec, 1
    s_waitcnt lgkmcnt(0)
    ds_add_u32 v{vt0}, v{vfour}
    s_mov_b64 exec, -1
    s_mul_i32 s3, s2, {o.alpha}
    s_sub_u32 s3, 0x10000, s3
    s_mul_i32 s3, s3, s{stot}
    s_lshr_b32 s3, s3, 16
    s_cmp_eq_u32 s{sw}, {o.tw}
    s_cselect_b32 s{sthr}, s3, 0xc0000000
    {'s_mov_b32 s5, 0' if o.fine else ''}
    s_cmp_eq_u32 s{stot}, 0
    s_cbranch_scc1 K2_done
    K2_loop:
    ds_read_b64_tr_b16 v[{vA}:{vA+1}], v{vKT}
    ds_read_b64_tr_b16 v[{vA+2}:{vA+3}], v{vKT+1}
    """)
    keys_read()
    a(f"""
    {f's_cmp_le_i32 s{sn}, s{sthr}' if PB else ''}
    {'s_cbranch_scc1 F_pfB' if PB else ''}
    F_pfB_ret:
    s_cmp_ge_i32 s{sn}, s{sq}
    s_cbranch_scc1 K2_prio
    s_setprio 2
    K2_prio:
    s_waitcnt lgkmcnt(0)
    """)
    addr_calc()
    a(f"s_cmp_le_i32 s{sn}, 0\ns_waitcnt vmcnt(0)")
    def smf(q):
        a(f"v_smfmac_f32_32x32x32_bf16 v[{vacc+16*q}:{vacc+16*q+15}], v[{vA}:{vA+3}], v[{vB+8*q}:{vB+8*q+7}], v{vidx}")
    if o.il:
        a("s_cbranch_scc1 K2_lastg")
        for q in range(4):
            smf(q)
            for r in range(o.il):
                a(f"buffer_load_dword v{vB+8*q+r}, v{vK+r}, s[{sX}:{sX+3}], 0 offen offset:{128*q}")
        row_loads(o.il, 4)
        a(f"s_sub_i32 s{sn}, s{sn}, 64\ns_cmp_le_i32 s{sn}, -32\ns_cbranch_scc1 K2_loop")
        row_loads(4, 8)
        a("s_branch K2_loop\nK2_lastg:")
    for q in range(4): smf(q)
    if o.fine:
        a("s_add_u32 s5, s5, 1")
        for k, it in enumerate(int(z) for z in o.fine.split(",")):
            a(f"s_cmp_eq_u32 s5, {it}\ns_cbranch_scc0 D_{k}")
            stamp(1 + k)
            a(f"D_{k}:")
        a(f"s_cmp_le_i32 s{sn}, 0")
    if o.il:
        a("s_branch K2_done")
    else:
        a("s_cbranch_scc1 K2_done")
        row_loads(0, 4)
        a(f"s_sub_i32 s{sn}, s{sn}, 64\ns_cmp_le_i32 s{sn}, -32\ns_cbranch_scc1 K2_loop")
        row_loads(4, 8)
        a("s_branch K2_loop")

    def tagpoll(name, ret):
        a(f"""
        {name}:
        s_mov_b32 s{spoll}, 0x40000
        v_mov_b32 v{vt0}, 0
        {name}_l:
        global_load_dword v{vt1}, v{vt0}, s[{sDBG}:{sDBG+1}] sc1
        s_waitcnt vmcnt(0)
        v_readfirstlane_b32 s{snonce}, v{vt1}
        s_cmp_lg_u32 s{snonce}, 0
        s_cbranch_scc1 {ret}
        s_sub_u32 s{spoll}, s{spoll}, 1
        s_cbranch_scc0 {name}_l
        s_endpgm
        """)
    h = vacc; hp = vW
    a(f"""
    F_helper:
    s_cmp_eq_u32 s{sw}, 10
    s_cbranch_scc1 F_scan
    s_cmp_lg_u32 s2, 0
    s_cbranch_scc1 F_h1
    s_memrealtime s[{smask+2}:{smask+3}]
    v_mov_b32 v{vt0}, 0
    s_waitcnt lgkmcnt(0)
    s_mul_i32 s3, s{smask+2}, 0x9e3779b1
    s_andn2_b32 s3, s3, 0x{ZM:x}
    s_or_b32 s3, s3, 1
    v_mov_b32 v{vt1}, s3
    global_store_dword v{vt0}, v{vt1}, s[{sDBG}:{sDBG+1}] sc1
    F_h1:
    v_and_b32 v{vt0}, 63, v0
    v_lshlrev_b32 v{vt0}, 7, v{vt0}
    s_lshr_b32 s3, s2, 3
    s_lshl_b32 s{st0}, s3, 9
    v_add_u32 v{vt1}, s{st0}, v{vt0}
    s_mul_i32 s{st0}, s3, 768
    v_add_u32 v{vt2}, s{st0}, v{vt0}
    s_waitcnt lgkmcnt(0)
    s_mov_b64 exec, 15
    global_load_dword v{vpf}, v{vt1}, s[{sW0}:{sW0+1}]
    s_mov_b64 exec, 63
    global_load_dword v{vpf}, v{vt2}, s[{sW1}:{sW1+1}]
    s_mov_b64 exec, 31
    global_load_dword v{vpf}, v{vt0}, s[{sWR}:{sWR+1}]
    s_mov_b64 exec, -1
    """)
    def warm0():
        a(f"""
        s_mul_i32 s3, s2, {8*o.nl2*128}
        v_add_u32 v{vt1}, s3, v{vt0}
        {f's_bfm_b64 exec, {8*o.nl2}, 0' if o.nl2 < 8 else ''}
        buffer_load_dword v{vpf}, v{vt1}, s[{sX}:{sX+3}], 0 offen
        s_mov_b64 exec, -1
        """)
    if o.nl2 and o.w0 == 0: warm0()
    a("s_barrier")
    early()
    a("s_barrier\ns_barrier")
    if o.nl2 and o.w0 == 2: warm0()
    a(f"""
    s_load_dword s{snonce}, s[{sDBG}:{sDBG+1}], 0
    s_waitcnt lgkmcnt(0)
    s_cmp_lg_u32 s{snonce}, 0
    s_cbranch_scc1 F_out
    s_branch F_tagA
    """)
    a(f"""
    F_scan:
    v_and_b32 v{h}, 63, v0
    v_lshlrev_b32 v{h+1}, 4, v{h}
    v_mov_b32 v{h+4}, 0
    v_mov_b32 v{h+5}, 0
    v_mov_b32 v{h+6}, 0
    v_mov_b32 v{h+7}, 0
    ds_write_b128 v{h+1}, v[{h+4}:{h+7}] offset:{P_HIST}
    s_waitcnt lgkmcnt(0)
    s_barrier
    """)
    early()
    a(f"""
    s_lshl_b32 s3, s2, 11
    s_add_u32 s3, s3, {WS_OFF}
    v_add_u32 v{hp+8}, s3, v{h+1}
    v_and_b32 v{h+2}, 7, v{h}
    v_lshrrev_b32 v{h+3}, 3, v{h}
    v_lshlrev_b32 v{h+3}, 2, v{h+3}
    v_lshl_add_u32 v{h+2}, v{h+2}, 7, v{h+3}
    v_add_u32 v{h+3}, {P_BASE}, v{h+2}
    v_add_u32 v{h+2}, {P_HIST}, v{h+2}
    s_barrier
    ds_read2_b32 v[{h+4}:{h+5}], v{h+2} offset0:0 offset1:8
    ds_read2_b32 v[{h+6}:{h+7}], v{h+2} offset0:16 offset1:24
    s_waitcnt lgkmcnt(0)
    v_add_u32 v{h+9}, v{h+4}, v{h+5}
    v_add_u32 v{h+10}, v{h+9}, v{h+6}
    v_add_u32 v{h+11}, v{h+10}, v{h+7}
    v_mov_b32 v{h+12}, v{h+11}
    """)
    dpp_scan(a, h + 12)
    a(f"""
    v_sub_u32 v{h+16}, v{h+12}, v{h+11}
    v_add_u32 v{h+17}, v{h+16}, v{h+4}
    ds_write2_b32 v{h+3}, v{h+16}, v{h+17} offset0:0 offset1:8
    v_add_u32 v{h+18}, v{h+16}, v{h+9}
    v_add_u32 v{h+19}, v{h+16}, v{h+10}
    ds_write2_b32 v{h+3}, v{h+18}, v{h+19} offset0:16 offset1:24
    s_waitcnt lgkmcnt(0)
    s_barrier
    s_load_dword s{snonce}, s[{sDBG}:{sDBG+1}], 0
    v_lshl_or_b32 v{hp}, v{h+4}, 16, v{h+16}
    v_lshl_or_b32 v{hp+2}, v{h+5}, 16, v{h+17}
    v_lshl_or_b32 v{hp+4}, v{h+6}, 16, v{h+18}
    v_lshl_or_b32 v{hp+6}, v{h+7}, 16, v{h+19}
    s_waitcnt lgkmcnt(0)
    s_cmp_eq_u32 s{snonce}, 0
    s_cbranch_scc1 F_tagD
    F_tagD_ret:
    s_nop 1
    v_mov_b32 v{hp+1}, s{snonce}
    v_mov_b32 v{hp+3}, s{snonce}
    v_mov_b32 v{hp+5}, s{snonce}
    v_mov_b32 v{hp+7}, s{snonce}
    global_store_dwordx4 v{hp+8}, v[{hp}:{hp+3}], s[{sWS}:{sWS+1}] sc1
    global_store_dwordx4 v{hp+8}, v[{hp+4}:{hp+7}], s[{sWS}:{sWS+1}] offset:1024 sc1
    s_branch F_out
    """)
    if o.mall:
        base = 2048 * o.nl2
        per = o.na
        a(f"""
        F_prefetch:
        s_mov_b64 exec, -1
        v_and_b32 v{vt0}, 63, v0
        s_mul_i32 s3, s2, {per*128}
        s_add_u32 s3, s3, {base*128}
        v_lshl_add_u32 v{vt1}, v{vt0}, 7, s3
        """)
        for i in range(0, per, 64):
            n = min(64, per - i)
            if n < 64: a(f"v_cmp_gt_u32 vcc, {n}, v{vt0}\ns_mov_b64 exec, vcc")
            a(f"buffer_load_dword v{vpf}, v{vt1}, s[{sX}:{sX+3}], 0 offen\nv_add_u32 v{vt1}, 8192, v{vt1}")
        a("s_mov_b64 exec, -1\ns_branch F_prefetched")
        if PB:
            perb = PB
            a(f"""
            F_pfB:
            s_mov_b32 s{sthr}, 0xc0000000
            s_mul_i32 s3, s2, {perb*128}
            s_add_u32 s3, s3, {(base+256*o.na)*128}
            v_and_b32 v{vpg}, 63, v0
            v_lshl_add_u32 v{vpg}, v{vpg}, 7, s3
            """)
            for i in range(0, perb, 64):
                n = min(64, perb - i)
                if n < 64: a(f"s_bfm_b64 exec, {n}, 0")
                a(f"buffer_load_dword v{vpf}, v{vpg}, s[{sX}:{sX+3}], 0 offen\nv_add_u32 v{vpg}, 8192, v{vpg}")
            a("s_mov_b64 exec, -1\ns_branch F_pfB_ret")

    vP = vB; vD = vB + 16
    vF = vacc
    def arrive_wait(name, off, spec=None):
        a(f"""
        v_mov_b32 v{vt0}, s{sgk}
        s_mov_b64 exec, 1
        ds_add_rtn_u32 v{vt1}, v{vt0}, v{vfour} offset:{off}
        s_mov_b64 exec, -1
        """)
        if spec: spec()
        a(f"""
        s_waitcnt lgkmcnt({2 if spec else 0})
        v_readfirstlane_b32 s3, v{vt1}
        s_cmp_eq_u32 s3, 12
        s_cbranch_scc1 {name}_ok
        s_setprio 0
        {name}:
        ds_read_b32 v{vt1}, v{vt0} offset:{off}
        """)
        if spec: spec()
        a(f"""
        s_sub_u32 s{spoll}, s{spoll}, 1
        s_cbranch_scc1 F_end
        s_waitcnt lgkmcnt({2 if spec else 0})
        v_readfirstlane_b32 s3, v{vt1}
        s_cmp_lg_u32 s3, 16
        s_cbranch_scc1 {name}
        {name}_ok:
        s_setprio 1
        """)
    a(f"""
    K2_done:
    s_cmp_lg_u32 s{smore}, 0
    s_cbranch_scc1 K2_next
    s_cmp_eq_u32 s{sWin}, 1
    s_cbranch_scc1 K2_next
    K2_last:
    s_setprio 3
    """)
    stamp(8); clk(1)
    a(f"""
    s_mov_b32 s{spoll}, 0x1000000
    K2_guard:
    ds_read_b32 v{vt2}, v{vt0}
    s_sub_u32 s{spoll}, s{spoll}, 1
    s_cbranch_scc1 F_end
    s_nop 5
    s_waitcnt lgkmcnt(0)
    v_readfirstlane_b32 s3, v{vt2}
    s_cmp_lg_u32 s3, 48
    s_cbranch_scc1 K2_guard
    """)
    for cp in range(2):
        R = lambda p, q, pi: vacc + 16 * q + 8 * pi + 4 * cp + p
        cv = lambda d, p, q: a(f"v_cvt_pk_bf16_f32 v{d}, v{R(p,q,0)}, v{R(p,q,1)}")
        off = 2 * cp * TSTR
        for oo in (1, 2, 3):
            d = vP + 4 * oo
            cv(d, oo, 0); cv(d + 1, 0, oo)
            a(f"ds_write_b64 v{vwa}, v[{d}:{d+1}] offset:{off + 256 + 384*(oo-1)}")
        for pi in range(2):
            a(f"v_add_f32 v{R(1,1,pi)}, v{R(1,1,pi)}, v{R(2,2,pi)}")
            a(f"v_sub_f32 v{R(2,3,pi)}, v{R(2,3,pi)}, v{R(3,2,pi)}")
            a(f"v_sub_f32 v{R(3,1,pi)}, v{R(3,1,pi)}, v{R(1,3,pi)}")
            a(f"v_sub_f32 v{R(1,2,pi)}, v{R(1,2,pi)}, v{R(2,1,pi)}")
            a(f"v_add_f32 v{R(1,1,pi)}, v{R(1,1,pi)}, v{R(3,3,pi)}")
        cv(vP, 0, 0); cv(vP + 1, 1, 1)
        a(f"ds_write_b64 v{vwa}, v[{vP}:{vP+1}] offset:{off}")
        for oo, (p4, q4) in ((1, (2, 3)), (2, (3, 1)), (3, (1, 2))):
            d = vP + 4 * oo
            cv(d + 2, p4, q4)
            a(f"ds_write_b32 v{vwb}, v{d+2} offset:{off + 512 + 384*(oo-1)}")
    arrive_wait("K2_s1", 0)
    stamp(9)
    frs = [(0, ks) for ks in range(4)] + [(oo, ks) for ks in range(6) for oo in (1, 2, 3)]
    NF = len(frs); NB = 12
    def rd(i):
        oo, ks = frs[i]
        off = 64 * ks + (0 if oo == 0 else 256 + 384 * (oo - 1))
        a(f"ds_read_b128 v[{vF+4*(i%16)}:{vF+4*(i%16)+3}], v{vra} offset:{off}")
    for i in range(NB): rd(i)
    a(f"s_cmp_lt_u32 s{sw}, 8")
    gate = ([f"v_mul_f32 v{vP+r}, 0xbfb8aa3b, v{vD+r}" for r in range(4)] + [f"v_exp_f32 v{vP+r}, v{vP+r}" for r in range(4)] +
            [f"v_add_f32 v{vP+r}, 1.0, v{vP+r}" for r in range(4)] + [f"v_rcp_f32 v{vP+r}, v{vP+r}" for r in range(4)] +
            [f"v_cvt_pk_bf16_f32 v{vP+4}, v{vD}, v{vD+1}", f"v_cvt_pk_bf16_f32 v{vP+5}, v{vD+2}, v{vD+3}"])
    for i in range(NF):
        oo, ks = frs[i]
        wreg = vW + 4 * (ks if oo == 0 else 4 + ks)
        a(f"s_waitcnt lgkmcnt({min(NB-1, NF-1-i)})")
        c = "0" if ks == 0 else f"v[{vD+4*oo}:{vD+4*oo+3}]"
        a(f"v_mfma_f32_16x16x32_bf16 v[{vD+4*oo}:{vD+4*oo+3}], v[{wreg}:{wreg+3}], v[{vF+4*(i%16)}:{vF+4*(i%16)+3}], {c}")
        if i + NB < NF: rd(i + NB)
        if i == 7:
            a("s_cbranch_scc1 K2_g0")
            for r in range(4):
                a(f"v_add_f32_dpp v{vD+r}, v{vD+r}, v{vD+r} row_ror:8 row_mask:0xf bank_mask:0xf")
            a("K2_g0:")
        if i >= 8:
            for _ in range(2 if i < 12 else 1):
                if gate: a(gate.pop(0))
    assert not gate
    a(f"""
    ds_write_b64 v{voa}, v[{vP+4}:{vP+5}]
    s_cbranch_scc1 K2_g1
    """)
    for r in range(4, 16):
        a(f"v_add_f32_dpp v{vD+r}, v{vD+r}, v{vD+r} row_ror:8 row_mask:0xf bank_mask:0xf")
    a("K2_g1:")
    for oo in range(1, 4):
        for r in range(4):
            a(f"v_mul_f32 v{vD+4*oo+r}, v{vP+r}, v{vD+4*oo+r}")
        a(f"v_cvt_pk_bf16_f32 v{vD+4*oo}, v{vD+4*oo}, v{vD+4*oo+1}\nv_cvt_pk_bf16_f32 v{vD+4*oo+1}, v{vD+4*oo+2}, v{vD+4*oo+3}")
        a(f"ds_write_b64 v{voa}, v[{vD+4*oo}:{vD+4*oo+1}] offset:{128*oo}")
    arrive_wait("K2_s2", 16, lambda: a(f"ds_read_b128 v[{vF}:{vF+3}], v{vsr}\nds_read_b128 v[{vF+4}:{vF+7}], v{vsr} offset:{8*OSTR}"))
    stamp(10)
    a(f"""
    s_cmp_ge_u32 s{sw}, 8
    s_mov_b32 s3, {8<<17}
    s_waitcnt lgkmcnt({0 if o.diag else 1})
    buffer_store_dwordx4 v[{vF}:{vF+3}], v{vso}, s[{sO}:{sO+3}], 0 offen {o.k2st}
    s_cbranch_scc1 K2_fin
    s_waitcnt lgkmcnt(0)
    buffer_store_dwordx4 v[{vF+4}:{vF+7}], v{vso}, s[{sO}:{sO+3}], s3 offen {o.k2st}
    K2_fin:
    """)
    if o.diag:
        a("s_waitcnt vmcnt(0)")
        stamp(11)
        a(f"""s_waitcnt lgkmcnt(0)
        s_mov_b64 exec, 1
        s_lshl_b32 s3, s2, 10
        s_add_u32 s3, s3, {WS_TS + 0x40000}
        s_lshl_b32 s{sw}, s{sw}, 6
        s_add_u32 s3, s3, s{sw}
        v_mov_b32 v{vt0}, s3""")
        for i in range(14):
            a(f"v_mov_b32 v{vt1}, s{TS+2*i}\nglobal_store_dword v{vt0}, v{vt1}, s[{sWS}:{sWS+1}] offset:{4*i}")
    a("F_end:\ns_endpgm")

    tagpoll("F_tagA", "F_out")
    tagpoll("F_tagD", "F_tagD_ret")
    a(f"""
    F_repoll:
    buffer_load_dwordx2 v[{voffs}:{voffs+1}], v{vpa}, s[{sWS}:{sWS+3}], 0 offen sc1
    s_sub_u32 s{spoll}, s{spoll}, 1
    s_waitcnt vmcnt(0)
    s_cbranch_scc0 F_poll
    s_endpgm
    F_retry:
    """)
    for r in range(NR0 + 1):
        a(f"""
        s_mov_b64 exec, s[{spend+2*r}:{spend+2*r+1}]
        s_cbranch_execz F_retry{r}
        """)
        recload(r)
        a(f"F_retry{r}:")
    a(f"""
    s_waitcnt vmcnt(0)
    s_sub_u32 s{spoll}, s{spoll}, 1
    s_cbranch_scc0 F_sweep
    s_endpgm
    K2_x1:
    """)
    rload(X1, vb1, vr1, 1)
    a(f"s_mov_b64 s[{spend+2*X1}:{spend+2*X1+1}], s[{smask+2*X1}:{smask+2*X1+1}]\nK2_x1_l:\ns_waitcnt vmcnt(0)")
    pass1(X1)
    a(f"""
    s_mov_b64 exec, s[{spend+2*X1}:{spend+2*X1+1}]
    s_cbranch_execz K2_x1_ok
    """)
    recload(X1)
    a(f"""
    s_sub_u32 s{spoll}, s{spoll}, 1
    s_cbranch_scc0 K2_x1_l
    s_endpgm
    K2_x1_ok:
    s_waitcnt lgkmcnt(0)
    """)
    keyw(X1)
    a(f"""
    s_mov_b64 exec, -1
    s_cmp_le_u32 s{st1}, 8
    s_cbranch_scc1 K2_x1_ret
    s_mov_b64 s[{sfull}:{sfull+1}], -1
    s_branch K2_x1_ret
    K2_setmore:
    v_mov_b32 v{vt0}, {L_FLAG}
    ds_write_b32 v{vt0}, v{vfour} offset:4
    s_branch K2_setmore_ret
    K2_setslow:
    s_mov_b64 exec, -1
    v_mov_b32 v{vt0}, {L_FLAG}
    ds_write_b32 v{vt0}, v{vfour}
    s_branch K2_setslow_ret
    K2_goslow:
    s_cmp_eq_u32 s{sWin}, 1
    s_cbranch_scc1 F_end
    s_movk_i32 s{sWin}, 1
    s_mov_b32 s{scol}, 0x00010001
    s_mov_b32 s{scol+1}, 0x00010001
    s_branch K2_again
    K2_next:
    s_cmp_lg_u32 s{sWin}, 1
    s_cbranch_scc1 K2_advance
    s_lshl_b64 s[{scol}:{scol+1}], s[{scol}:{scol+1}], 1
    s_cmp_lg_u32 s{scol}, 0x00400040
    s_cbranch_scc1 K2_again
    s_cmp_eq_u32 s{smore}, 0
    s_cbranch_scc1 K2_last
    s_mov_b32 s{scol}, 0x00010001
    s_mov_b32 s{scol+1}, 0x00010001
    K2_advance:
    s_add_u32 s{sI0}, s{sI0}, s{sWin}
    K2_again:
    s_nop 7
    s_nop 7
    s_waitcnt vmcnt(0) lgkmcnt(0)
    s_barrier
    s_branch K2_batch
    """)
    return a.text(), nv, 102, lds

def main():
    ap = argparse.ArgumentParser()
    ap.add_argument("-o", default=f"cdna_kernels/{NAME}.s")
    ap.add_argument("--k1ld", default="nt")
    ap.add_argument("--k2st", default="sc1 nt")
    ap.add_argument("--diag", action="store_true")
    ap.add_argument("--mall", type=int, default=4)
    ap.add_argument("--pth", type=int, default=8)
    ap.add_argument("--tf", type=int, default=0)
    ap.add_argument("--f2", type=int, default=0)
    ap.add_argument("--pre", type=int, default=0)
    ap.add_argument("--rprio", default="")
    ap.add_argument("--wb", type=int, default=0)
    ap.add_argument("--recld", default="")
    ap.add_argument("--b96", type=int, default=0)
    ap.add_argument("--nl2", type=int, default=0)
    ap.add_argument("--w0", type=int, default=0)
    ap.add_argument("--il", type=int, default=0)
    ap.add_argument("--kw", default="")
    ap.add_argument("--dw", type=int, default=4)
    ap.add_argument("--fine", default="")
    ap.add_argument("--na", type=int, default=64)
    ap.add_argument("--tw", type=int, default=0)
    ap.add_argument("--alpha", type=int, default=128)
    o = ap.parse_args()
    k, nv, ns, lds = gen(o)
    hdr = open(f"cdna_kernels/{NAME}.s.ref").read().split("; Override launch")[0]
    kn = f"{NAME}_kernel"
    nv8 = (nv + 7) // 8 * 8
    s = hdr
    if o.diag: s += "; diag: n1=0 n2=12 nw=12 m0=7 fused=1\n"
    s += f"; @launch grid=(256,1,1) block=(768,1,1) lds={lds}\n"
    s += '.amdgcn_target "amdgcn-amd-amdhsa--gfx950"\n.text\n'
    s += f".globl {kn}\n.p2align 8\n.type {kn},@function\n{kn}:\n{k}"
    s += f""".section .rodata,"a"
.p2align 6
.amdhsa_kernel {kn}
  .amdhsa_next_free_vgpr {nv8}
  .amdhsa_next_free_sgpr {ns}
  .amdhsa_accum_offset {nv8}
  .amdhsa_group_segment_fixed_size 0
  .amdhsa_kernarg_size 96
  .amdhsa_user_sgpr_count 2
  .amdhsa_user_sgpr_kernarg_segment_ptr 1
  .amdhsa_system_sgpr_workgroup_id_x 1
.end_amdhsa_kernel
"""
    open(o.o, "w").write(s)
    print(f"wrote {o.o}: vgpr {nv} lds {lds}")

if __name__ == "__main__":
    main()
```

```python
import sys, argparse, re

NAME = "standalone__tensor_product_equiv_equiformer__graph"
NPROD = 256
CHUNK = 2500
RECB = CHUNK // 5 * 64
WS_OFF = NPROD * RECB
WS_END = WS_OFF + NPROD * 2048
WS_TS = 0x1000000

class Asm:
    def __init__(self):
        self.lines = []
    def __call__(self, s):
        for l in s.strip("\n").split("\n"):
            l = l.strip()
            if not l:
                continue
            self.lines.append(l if (l.endswith(":") or l.startswith(".")) else "    " + l)
    def text(self):
        return "\n".join(self.lines) + "\n"

class Regs:
    def __init__(self, start=0):
        self.n = start
    def get(self, cnt=1, align=1):
        self.n = (self.n + align - 1) // align * align
        r = self.n; self.n += cnt
        return r

def dpp_scan(a, v, lanes=64):
    for sh in (1, 2, 4, 8):
        a(f"s_nop 1\nv_add_u32_dpp v{v}, v{v}, v{v} row_shr:{sh} row_mask:0xf bank_mask:0xf")
    if lanes == 64:
        a(f"s_nop 1\nv_add_u32_dpp v{v}, v{v}, v{v} row_bcast:15 row_mask:0xa bank_mask:0xf")
        a(f"s_nop 1\nv_add_u32_dpp v{v}, v{v}, v{v} row_bcast:31 row_mask:0xc bank_mask:0xf")

SD = "dst_sel:DWORD dst_unused:UNUSED_PAD src0_sel:DWORD src1_sel:"

def gen(o):
    a = Asm()
    NPH = 16
    PHC = (NPH << 24) // 10000
    assert (9999 * PHC) >> 24 == NPH - 1 and PHC < 32768
    NT = 768
    NR0 = 6; NR = NR0 + 2; X0 = NR0; X1 = NR0 + 1
    BINE = 52; BINCAP = 48; WREG = 16 * BINE * 4
    TSTR = 1440; OSTR = 528; WSTR = 160
    L_CNT = 0; L_FLAG = 1024; L_KEYS = L_FLAG + 64
    L_COEF = L_KEYS + 12 * WREG
    ZSLOT = NR * NT
    L_ZERO = L_COEF + ZSLOT * 8
    L_T = L_ZERO + 16
    L_END = L_T + 48 * TSTR
    L_W = L_T
    P_ST = L_COEF
    P_HIST = L_KEYS + 256; P_BASE = P_HIST + 1024
    lds = L_END
    assert 4 * WREG >= 16 * OSTR and 16 * BINCAP + 64 <= 16 * BINE
    assert lds <= 163840 and lds <= 131072 + L_COEF and L_KEYS % 16 == 0 and L_T % 16 == 0 and L_COEF % 16 == 0
    assert P_ST + RECB <= L_ZERO and 320 * WSTR <= 48 * TSTR
    DUMMY = (ZSLOT << 16) | 0xFFFF
    ZM = 0x003fc000

    V = Regs(1)
    vt0 = V.get(); vt1 = V.get(); vt2 = V.get()
    voffs = V.get(); vt3 = V.get()
    vA = V.get(4, 2)
    vbase, vrem, vb1, vr1 = vA, vA + 1, vA + 2, vA + 3
    vKT = vt1
    vpb = V.get(); vi16 = V.get(); vslot = V.get(); vfour = V.get(); vcidx = V.get(); vpa = V.get()
    vlo4 = V.get(); vKc = V.get(); vidx = V.get(); vka = V.get(); vkt = V.get()
    vacc = V.get(64, 2)
    vW = V.get(40, 2)
    vB = V.get(32, 2)
    vK = V.get(8, 2)
    vpf = V.get(); vpg = V.get()
    vrec = vB; vha = vK
    vra = vpb; voa = vi16; vwa = vslot; vwb = vcidx; vsr = vpa; vso = vt3
    nv = V.n
    assert nv <= 168 and vt1 % 2 == 0 and voffs % 2 == 0, nv

    sRH = 4; sEA = 6; sSRC = 8; sDST = 10; sWR = 12; sW0 = 14; sW1 = 16; sDBG = 18
    spend = 4
    sX = 20; sO = 24; sWS = 28
    scap = 32; sw = 33; sI0 = 34; sWin = 35; sn = 36; s512 = 37; st0 = 38; st1 = 39; sM = 40; stot = 41; sq = 42; snonce = 43
    smask = 44; sovf = 60; sgk = 60; smore = 62; scol = 64; spoll = 66; sfirst = 67; sHI = 68; sZ = 69
    s4100 = smask + 4; s800 = smask + 5; sPH = smask + 6; sst3 = smask + 8; sact = smask + 10; stmp = 70; sfull = 72
    TS = 74; sthr = 4; s5th = 1
    PB = max(0, -(-(40000 - 2048 * o.nl2 - 256 * o.na) // 256))
    nst = [0]
    def stamp(i):
        if o.diag:
            a(f"s_memrealtime s[{TS+2*i}:{TS+2*i+1}]")
    def clk(i):
        if o.diag:
            a(f"s_memtime s[{TS+24+2*i}:{TS+25+2*i}]")
    ld = o.k1ld
    stamp(0)
    a(f"""
    s_cmp_ge_u32 s2, 256
    s_cbranch_scc1 F_end
    s_load_dwordx8 s[{sRH}:{sRH+7}], s[0:1], 8
    s_load_dwordx4 s[{sWR}:{sWR+3}], s[0:1], 40
    s_load_dwordx2 s[{sW1}:{sW1+1}], s[0:1], 56
    s_load_dwordx2 s[{sDBG}:{sDBG+1}], s[0:1], 80
    s_load_dwordx2 s[{sX}:{sX+1}], s[0:1], 0
    s_load_dwordx2 s[{sO}:{sO+1}], s[0:1], 72
    s_load_dwordx2 s[{sWS}:{sWS+1}], s[0:1], 88
    s_getpc_b64 s[{sovf}:{sovf+1}]
    F_pc:
    {f'v_lshlrev_b32 v{vt1}, 7, v0' if o.csplit == 0 else f's_bfe_u32 s3, s2, 0x{(o.csplit << 16) | 3:x}' + chr(10) + f's_lshl_b32 s3, s3, 7' + chr(10) + f'v_lshl_add_u32 v{vt1}, v0, {7+o.csplit}, s3'}
    v_cmp_gt_u32 vcc, {'F_last-F_pc+124' if o.ctall else 'F_end-F_pc'}, v{vt1}
    {f'v_min_u32 v{vt1}, F_last-F_pc, v{vt1}' if o.ctall else ''}
    s_and_saveexec_b64 s[{smore}:{smore+1}], vcc
    s_cbranch_execz F_notouch
    global_load_dword v{vpf}, v{vt1}, s[{sovf}:{sovf+1}]
    F_notouch:
    s_mov_b64 exec, s[{smore}:{smore+1}]
    v_lshrrev_b32 v{vt0}, 6, v0
    s_mul_i32 s3, s2, {CHUNK*4}
    v_readfirstlane_b32 s{sw}, v{vt0}
    s_mov_b32 s{sWS+2}, {WS_END}
    s_mov_b32 s{sWS+3}, 0x20000
    s_mov_b32 s{sX+2}, 5120000
    s_mov_b32 s{sX+3}, 0x20000
    s_mov_b32 s{sO+2}, 5120000
    s_mov_b32 s{sO+3}, 0x20000
    s_and_b32 s{st1}, s2, 7
    s_lshl_b32 s{st1}, s{st1}, 5
    s_lshr_b32 s{st0}, s2, 3
    s_or_b32 s{st1}, s{st1}, s{st0}
    s_lshr_b32 s{sn}, s{st1}, 2
    s_lshl_b32 s{sn}, s{sn}, 4
    s_bfe_u32 s{st0}, s{st1}, 0x10001
    s_lshl_b32 s{st0}, s{st0}, 10
    s_add_u32 s{sn}, s{sn}, s{st0}
    s_and_b32 s{st0}, s{st1}, 1
    s_lshl_b32 s{st0}, s{st0}, 3
    s_add_u32 s{sn}, s{sn}, s{st0}
    s_add_u32 s{sn}, s{sn}, {WS_OFF}
    s_cmp_ge_u32 s{sw}, 10
    s_cbranch_scc1 F_helper
    """)
    P = vacc
    pD = P; pS = P + 4; pE = P + 8; pR0 = P + 10; pR1 = P + 14; pH = P + 18; pRk = P + 22; pRec = P + 26
    pa0 = P + 42; pa1 = P + 43; pa2 = P + 44; p16 = P + 45; pT = P + 46
    pw0 = P + 50; pw1 = P + 51; pl = P + 52; pso = P + 53; pla = P + 57
    wraw = vW; wsc = vW + 16; wtmp = vW + 20; wad = vW + 28
    def unpack(dst, src, hi):
        a(f"v_and_b32 v{dst}, s{sHI}, v{src}" if hi else f"v_lshlrev_b32 v{dst}, 16, v{src}")
    def batch_init():
        a(f"""
        v_and_b32 v{vi16}, 15, v0
        v_lshrrev_b32 v{vt0}, 4, v0
        v_mad_u32_u24 v{vt3}, v{vi16}, 48, v{vt0}
        v_mul_u32_u24 v{vpb}, {CHUNK}, v{vt3}
        v_lshlrev_b32 v{vslot}, 3, v0
        v_add_u32 v{vslot}, {L_COEF}, v{vslot}
        s_lshl_b32 s3, s{sw}, 4
        v_add_lshl_u32 v{vcidx}, v{vi16}, s3, 2
        s_mul_i32 s{st0}, s{sw}, {WREG}
        s_add_u32 s{st0}, s{st0}, {L_KEYS}
        v_bfe_u32 v{vt0}, v0, 5, 1
        v_lshl_add_u32 v{vka}, v{vt0}, 4, s{st0}
        v_lshl_add_u32 v{vkt}, v{vt0}, 5, s{st0}
        v_and_b32 v{vt0}, 12, v0
        v_add_u32 v{vkt}, v{vkt}, v{vt0}
        v_lshlrev_b32 v{vt0}, 2, v0
        v_min_u32 v{vt0}, {L_KEYS-4}, v{vt0}
        v_mov_b32 v{vt1}, 0
        v_mov_b32 v{vt2}, 0
        ds_write_b32 v{vt0}, v{vt1} offset:{L_CNT}
        v_mov_b32 v{vt0}, {L_ZERO}
        ds_write_b64 v{vt0}, v[{vt1}:{vt2}]
        v_lshl_add_u32 v{vt0}, v{vi16}, 2, s{st0}
        v_mov_b32 v{vt1}, 0x{DUMMY:x}
        ds_write_b32 v{vt0}, v{vt1}
        s_mov_b32 s{spoll}, 0x40000
        s_mov_b64 s[{sfull}:{sfull+1}], 0
        """)
    a(f"""
    v_lshl_add_u32 v{pa0}, v0, 4, s3
    v_cmp_gt_u32 vcc, {CHUNK//4}, v0
    v_lshrrev_b32 v{pa1}, 1, v{pa0}
    v_add_u32 v{pa2}, v{pa0}, v{pa1}
    s_mov_b64 exec, vcc
    s_mov_b64 s[{sact}:{sact+1}], vcc
    s_waitcnt lgkmcnt(0)
    global_load_dwordx4 v[{pD}:{pD+3}], v{pa0}, s[{sDST}:{sDST+1}] {ld}
    s_barrier
    global_load_dwordx4 v[{pS}:{pS+3}], v{pa0}, s[{sSRC}:{sSRC+1}] {ld}
    global_load_dwordx2 v[{pE}:{pE+1}], v{pa1}, s[{sEA}:{sEA+1}] {ld}
    global_load_dwordx3 v[{pR0}:{pR0+2}], v{pa2}, s[{sRH}:{sRH+1}] {ld}
    global_load_dwordx3 v[{pR1}:{pR1+2}], v{pa2}, s[{sRH}:{sRH+1}] offset:12 {ld}
    s_mov_b64 exec, -1
    F_early:
    {'s_mov_b32 s0, 0' if o.diag else ''}
    """)
    batch_init()
    a(f"""
    v_lshl_add_u32 v{vpa}, v{vt3}, 11, s{sn}
    v_mov_b32 v{voffs}, 0
    v_cmp_gt_u32 s[{smask}:{smask+1}], s{sWS+2}, v{vpa}
    s_mul_i32 s3, s2, {RECB}
    v_lshl_add_u32 v{pso}, v0, 4, s3
    v_add_u32 v{pso+1}, {NT*16}, v{pso}
    v_add_u32 v{pso+2}, {2*NT*16}, v{pso}
    v_lshlrev_b32 v{pla}, 4, v0
    v_add_u32 v{pla}, {P_ST}, v{pla}
    s_movk_i32 s3, {RECB//16 - 2*NT}
    v_cmp_gt_u32 s[{sst3}:{sst3+1}], s3, v0
    s_mov_b32 s{stmp}, 0x88888888
    s_mov_b32 s{stmp+1}, 0x88888888
    v_mov_b32 v{vfour}, 4
    s_movk_i32 s{s512}, 512
    s_mov_b32 s{sI0}, 0
    s_movk_i32 s{sWin}, 32
    s_mov_b32 s{s5th}, 0x33333334
    s_movk_i32 s{scap}, {BINCAP*4}
    s_mov_b64 s[{scol}:{scol+1}], -1
    s_mov_b32 s{sM}, 0xc000ffff
    s_mov_b32 s{sZ}, 0x{ZM:x}
    s_mov_b32 s{sfirst}, 1
    v_and_b32 v{vt0}, 31, v0
    v_lshlrev_b32 v{vlo4}, 2, v{vt0}
    v_and_b32 v{vt2}, 3, v0
    v_lshlrev_b32 v{vt0}, 17, v{vt2}
    v_sub_u32 v{vKc}, {L_COEF}, v{vt0}
    v_bfe_u32 v{vt0}, v0, 4, 1
    v_mul_u32_u24 v{vt0}, 0x5555, v{vt0}
    v_add_u32 v{vidx}, 0x8888, v{vt0}
    s_cmp_ge_u32 s{sw}, 10
    s_cbranch_scc1 F_helper2
    v_and_b32 v{pl}, 63, v0
    s_cmp_lt_u32 s{sw}, 4
    s_cselect_b32 s{sW0}, s{sW0}, s{sW1}
    s_cselect_b32 s{sW0+1}, s{sW0+1}, s{sW1+1}
    s_cselect_b32 s3, 0, 4
    s_sub_u32 s3, s{sw}, s3
    s_lshl_b32 s3, s3, 12
    v_lshl_add_u32 v{pw0}, v{pl}, 4, s3
    v_lshrrev_b32 v{pw1}, 3, v{pl}
    v_mul_u32_u24 v{wad}, {WSTR}, v{pw1}
    s_lshl_b32 s3, s{sw}, 5
    v_add_lshl_u32 v{pw1}, v{pw1}, s3, 1
    s_mul_i32 s3, s{sw}, {32*WSTR}
    s_add_u32 s3, s3, {L_W}
    v_and_b32 v{wtmp}, 7, v0
    v_lshl_add_u32 v{wtmp}, v{wtmp}, 4, s3
    v_add_u32 v{wad}, v{wad}, v{wtmp}
    v_mov_b32 v{p16}, 1
    s_mov_b32 s{sHI}, 0xffff0000
    s_movk_i32 s{sPH}, {PHC}
    s_movk_i32 s{s4100}, 0x4100
    s_movk_i32 s{s800}, 0x800
    s_mov_b64 exec, s[{sact}:{sact+1}]
    s_waitcnt vmcnt(4)
    """)
    stamp(1)
    for i in range(4):
        a(f"v_lshlrev_b32_sdwa v{pH+i}, 2, v{pD+i} {SD}BYTE_0")
        a(f"ds_add_rtn_u32 v{pRk+i}, v{pH+i}, v{p16} offset:{P_HIST}")
    a("s_waitcnt lgkmcnt(0)\ns_barrier")
    for i in (1, 3):
        a(f"v_lshrrev_b32 v{pT}, 2, v{pD+i}\nv_and_or_b32 v{pD+i}, v{pT}, s{s800}, v{pD+i}")
    for i in range(4):
        a(f"v_mul_u32_u24_sdwa v{pD+i}, s{s4100}, v{pD+i} {SD}BYTE_1")
    for i in range(4):
        a(f"v_and_b32 v{pD+i}, 0xfc00, v{pD+i}          ; (l&3)<<14 | (l>>2)<<10")
    a("s_barrier")
    for i in range(4):
        a(f"ds_read_b32 v{pH+i}, v{pH+i} offset:{P_BASE}")
    a(f"s_waitcnt lgkmcnt(0)\ns_load_dword s{snonce}, s[{sDBG}:{sDBG+1}], 0")
    a(f"s_mov_b32 s3, {P_ST}")
    for i in range(4):
        a(f"""
        v_add_u32 v{pH+i}, v{pH+i}, v{pRk+i}
        v_mul_u32_u24 v{pT}, 52429, v{pH+i}
        v_lshrrev_b32 v{pT}, 18, v{pT}
        v_mad_u32_u24 v{pH+i}, v{pH+i}, 3, v{pT}
        v_lshl_add_u32 v{pH+i}, v{pH+i}, 2, s3
        """)
    a("s_waitcnt vmcnt(3)")
    for i in range(4):
        k = pRec + 4 * i + 2
        a(f"v_mul_u32_u24 v{k}, s{sPH}, v{pS+i}")
        a(f"v_lshlrev_b32_sdwa v{k}, 6, v{k} {SD}BYTE_3")
        a(f"v_or_b32 v{k}, v{k}, v{pD+i}")
        a(f"v_lshl_or_b32 v{k}, v{k}, 16, v{pS+i}")
        if not o.b96: a(f"ds_write_b32 v{pH+i}, v{k} offset:8")
    for i in range(4):
        if i == 0: a("s_waitcnt vmcnt(1)")
        if i == 2:
            a("s_waitcnt vmcnt(0)")
            stamp(2)
        R = pR0 if i < 2 else pR1
        c = pRec + 4 * i
        unpack(pT, pE + i // 2, i & 1)
        for j in range(3):
            el = 3 * (i & 1) + j
            unpack(pT + 1 + j, R + el // 2, el & 1)
        for j in range(3):
            a(f"v_mul_f32 v{pT+1+j}, v{pT}, v{pT+1+j}")
        a(f"v_cvt_pk_bf16_f32 v{c}, v{pT}, v{pT+1}")
        a(f"v_cvt_pk_bf16_f32 v{c+1}, v{pT+2}, v{pT+3}")
        a(f"ds_write_b96 v{pH+i}, v[{c}:{c+2}]" if o.b96 else f"ds_write2_b32 v{pH+i}, v{c}, v{c+1} offset0:0 offset1:1")
    a("s_mov_b64 exec, -1")
    for j in range(4):
        a(f"global_load_dwordx4 v[{wraw+4*j}:{wraw+4*j+3}], v{pw0}, s[{sW0}:{sW0+1}] offset:{1024*j}")
    for j in range(4):
        a(f"global_load_ushort v{wsc+j}, v{pw1}, s[{sWR}:{sWR+1}] offset:{16*j}")
    a(f"""
    s_waitcnt lgkmcnt(0)
    s_cmp_eq_u32 s{snonce}, 0
    s_cbranch_scc1 F_tagA
    F_out:
    s_barrier
    """)
    stamp(3)
    for j in range(3):
        a(f"ds_read_b128 v[{P+4*j}:{P+4*j+3}], v{pla} offset:{NT*16*j}")
    a(f"""
    v_mov_b32 v{pT}, s{snonce}
    """)
    for j in range(3):
        if j == 2: a(f"s_mov_b64 exec, s[{sst3}:{sst3+1}]\ns_cbranch_execz F_out2")
        a(f"s_waitcnt lgkmcnt({2-j})\nv_cndmask_b32 v{P+4*j+3}, v{P+4*j+3}, v{pT}, s[{stmp}:{stmp+1}]\nglobal_store_dwordx4 v{pso+j}, v[{P+4*j}:{P+4*j+3}], s[{sWS}:{sWS+1}] sc1")
    a(f"""
    F_out2:
    """)
    def pollissue():
        a(f"""
        s_mov_b64 exec, s[{smask}:{smask+1}]
        buffer_load_dwordx2 v[{voffs}:{voffs+1}], v{vpa}, s[{sWS}:{sWS+3}], 0 offen sc1
        """)
    a(f"""
    s_mov_b64 exec, -1
    s_cmp_ge_u32 s{sw}, 10
    s_cbranch_scc1 F_now
    s_cmp_lt_u32 s{sw}, 8
    s_waitcnt vmcnt(3)
    s_cbranch_scc1 F_w3
    s_waitcnt vmcnt(2)
    F_w3:
    """)
    for j in range(4):
        if j == o.pj:
            pollissue(); a("s_mov_b64 exec, -1")
        a(f"v_lshlrev_b32 v{wsc+j}, 16, v{wsc+j}")
        for i in range(8):
            unpack(wtmp + i, wraw + 4 * j + i // 2, i & 1)
        for i in range(4):
            a(f"v_pk_mul_f32 v[{wtmp+2*i}:{wtmp+2*i+1}], v[{wtmp+2*i}:{wtmp+2*i+1}], v[{wsc+(j&2)}:{wsc+(j&2)+1}] " + ("op_sel:[0,1]" if j & 1 else "op_sel_hi:[1,0]"))
        for i in range(4):
            a(f"v_cvt_pk_bf16_f32 v{wraw+4*j+i}, v{wtmp+2*i}, v{wtmp+2*i+1}")
        a(f"ds_write_b128 v{wad}, v[{wraw+4*j}:{wraw+4*j+3}] offset:{8*j*WSTR}")
    if o.pj < 4: a("s_branch F_b4")
    a(f"F_now:\ns_waitcnt vmcnt({o.pv})")
    pollissue()
    a(f"""
    F_b4:
    s_mov_b64 exec, s[{smask}:{smask+1}]
    s_waitcnt vmcnt(0) lgkmcnt(0)
    s_barrier
    """)
    stamp(4)
    a(f"""
    F_poll:
    v_cmp_ne_u32 vcc, s{snonce}, v{voffs+1}
    s_and_b64 exec, exec, vcc
    s_cbranch_scc1 F_repoll
    F_polled:
    s_mov_b64 exec, -1
    """)
    stamp(5)
    a(f"""
    v_and_b32 v{vt0}, 0xffff, v{voffs}
    v_lshrrev_b32 v{vt1}, 16, v{voffs}
    v_add3_u32 v{vbase}, v{vpb}, v{vt0}, s{sI0}
    v_subrev_u32 v{vt1}, s{sI0}, v{vt1}
    v_min_i32 v{vrem}, s{sWin}, v{vt1}
    v_cndmask_b32 v{vrem}, 0, v{vrem}, s[{scol}:{scol+1}]
    v_cmp_lt_i32 s[{smore}:{smore+1}], s{sWin}, v{vt1}
    """)
    def ovf():
        a(f"""
    v_subrev_u32 v{vr1}, 16, v{vrem}
    v_add_u32 v{vb1}, 16, v{vbase}
    v_cmp_lt_i32 s[{sovf}:{sovf+1}], 0, v{vr1}
    v_lshlrev_b32 v{vpa}, 16, v0
    v_mov_b32 v{vt2}, 60
    v_mbcnt_lo_u32_b32 v{vt0}, s{sovf}, 0
    v_mbcnt_hi_u32_b32 v{vt0}, s{sovf+1}, v{vt0}
    v_and_b32 v{vt1}, 3, v{vt0}
    v_and_b32 v{vt0}, 28, v{vt0}
    v_lshl_add_u32 v{vt0}, v{vt1}, 6, v{vt0}
    v_cndmask_b32 v{vt0}, v{vt2}, v{vt0}, s[{sovf}:{sovf+1}]
    ds_permute_b32 v{vb1}, v{vt0}, v{vb1}
    ds_permute_b32 v{vr1}, v{vt0}, v{vr1}
    """)
    if o.pre: ovf()
    def raddr(r, b, rm, col):
        a(f"""
        v_add_u32_dpp v{vha+r}, v{b}, v{vi16} row_newbcast:{col} row_mask:0xf bank_mask:0xf
        v_sub_u32_dpp v{vt0}, v{rm}, v{vi16} row_newbcast:{col} row_mask:0xf bank_mask:0xf
        v_mul_hi_u32 v{vt1}, v{vha+r}, s{s5th}
        v_cmp_lt_i32 s[{smask+2*r}:{smask+2*r+1}], 0, v{vt0}
        v_mad_u32_u24 v{vha+r}, v{vha+r}, 3, v{vt1}
        v_lshlrev_b32 v{vha+r}, 2, v{vha+r}                ; 12*g + 4*(g/5)
        v_or_b32 v{vrec+4*r+3}, 60, v{vha+r}
        """)
    def tagload(r):
        a(f"s_or_b64 exec, s[{smask+2*r}:{smask+2*r+1}], 1\nbuffer_load_dword v{vrec+4*r+3}, v{vrec+4*r+3}, s[{sWS}:{sWS+3}], 0 offen {o.recld}")
    def dataload(r):
        a(f"s_or_b64 exec, s[{smask+2*r}:{smask+2*r+1}], 1")
        a(f"buffer_load_dwordx3 v[{vrec+4*r}:{vrec+4*r+2}], v{vha+r}, s[{sWS}:{sWS+3}], 0 offen {o.recld}")
    def recload(r, first=False):
        pol = o.recld if first else "sc1"
        if first: a(f"s_or_b64 exec, s[{smask+2*r}:{smask+2*r+1}], 1")
        else: a(f"v_or_b32 v{vrec+4*r+3}, 60, v{vha+r}")
        a(f"""
        buffer_load_dword v{vrec+4*r+3}, v{vrec+4*r+3}, s[{sWS}:{sWS+3}], 0 offen {pol}
        buffer_load_dwordx3 v[{vrec+4*r}:{vrec+4*r+2}], v{vha+r}, s[{sWS}:{sWS+3}], 0 offen {pol}
        """)
    def rload(r, b, rm, col):
        raddr(r, b, rm, col); recload(r, True); a("s_mov_b64 exec, -1")
    pr = [int(c) for c in o.rprio] if o.rprio else None
    def prio(i):
        if pr: a(f"s_setprio {pr[i]}")
    if o.tf:
        if o.pre:
            for r in range(6): raddr(r, vbase, vrem, r)
            a("s_waitcnt lgkmcnt(0)\ns_nop 1")
            raddr(X0, vb1, vr1, 0)
            prio(0)
            a("s_barrier")
            stamp(4)
            for r in range(5): tagload(r)
        else:
            prio(0)
            for r in range(5):
                raddr(r, vbase, vrem, r); tagload(r); a("s_mov_b64 exec, -1")
                if r == 0: ovf()
            a(f"s_mov_b64 s[{smask+10}:{smask+11}], 0\ns_mov_b64 s[{smask+2*X0}:{smask+2*X0+1}], 0")
        prio(1)
        a(f"s_cmp_ge_u32 s{sw}, 4\ns_cbranch_scc1 F_nor5")
        if o.pre: recload(5, True)
        else: rload(5, vbase, vrem, 5)
        a(f"F_nor5:\ns_bcnt1_i32_b64 s{st1}, s[{sovf}:{sovf+1}]\ns_cbranch_scc0 F_nox0")
        if o.pre: recload(X0, True)
        else:
            a("s_waitcnt lgkmcnt(0)\ns_nop 1"); rload(X0, vb1, vr1, 0)
        a("F_nox0:")
        for r in range(5): dataload(r)
    elif o.pre:
        for r in range(6): raddr(r, vbase, vrem, r)
        a("s_waitcnt lgkmcnt(0)\ns_nop 1")
        raddr(X0, vb1, vr1, 0)
        prio(0)
        a(f"s_cmp_ge_u32 s{sw}, 4\ns_barrier")
        stamp(4)
        a("s_cbranch_scc1 F_nor5")
        recload(5, True)
        a("F_nor5:")
        a(f"s_bcnt1_i32_b64 s{st1}, s[{sovf}:{sovf+1}]\ns_cbranch_scc0 F_nox0")
        recload(X0, True)
        a("F_nox0:")
        for r in range(5):
            if r: prio(r)
            recload(r, True)
    else:
        prio(0)
        rload(0, vbase, vrem, 0)
        ovf()
        a(f"s_mov_b64 s[{smask+10}:{smask+11}], 0\ns_cmp_ge_u32 s{sw}, 4\ns_cbranch_scc1 F_nor5")
        rload(5, vbase, vrem, 5)
        a("F_nor5:")
        a(f"s_mov_b64 s[{smask+2*X0}:{smask+2*X0+1}], 0\ns_bcnt1_i32_b64 s{st1}, s[{sovf}:{sovf+1}]\ns_cbranch_scc0 F_nox0\ns_waitcnt lgkmcnt(0)\ns_nop 1")
        rload(X0, vb1, vr1, 0)
        a("F_nox0:")
        for r in range(1, 5):
            prio(r)
            rload(r, vbase, vrem, r)
    prio(5)
    if o.f2: stamp(1)
    a(f"""
    s_mov_b64 exec, -1
    s_cmp_gt_u32 s{st1}, 4
    s_cbranch_scc1 K2_x1
    K2_x1_ret:
    s_cmp_lg_u64 s[{smore}:{smore+1}], 0
    s_cbranch_scc1 K2_setmore
    K2_setmore_ret:
    """)
    a(f"s_cmp_eq_u32 s{sfirst}, 0\ns_cbranch_scc1 F_nozero\ns_mov_b32 s{sfirst}, 0")
    for i in range(32): a(f"v_mov_b64 v[{vacc+2*i}:{vacc+2*i+1}], 0")
    a("F_nozero:")
    for r in range(NR0 + 1):
        a(f"s_mov_b64 s[{spend+2*r}:{spend+2*r+1}], s[{smask+2*r}:{smask+2*r+1}]")
    def pass1(r):
        k = vrec + 4 * r + 2
        a(f"""
        s_mov_b64 exec, s[{spend+2*r}:{spend+2*r+1}]
        v_and_or_b32 v{vt0}, v{k}, s{sZ}, v{k+1}
        v_cmpx_eq_u32 vcc, s{snonce}, v{vt0}
        v_bfe_u32 v{vha+r}, v{k}, 20, 10
        v_add_u32 v{vt0}, {(r*NT) << 16}, v{vpa}
        s_andn2_b64 s[{spend+2*r}:{spend+2*r+1}], s[{spend+2*r}:{spend+2*r+1}], exec
        ds_add_rtn_u32 v{k+1}, v{vha+r}, v{vfour} offset:{L_CNT}
        ds_write_b64 v{vslot}, v[{k-2}:{k-1}] offset:{r*NT*8}
        v_and_or_b32 v{k}, v{k}, s{sM}, v{vt0}
        """)
    def keyw(r):
        k = vrec + 4 * r + 2
        a(f"""
        s_andn2_b64 s[{stmp}:{stmp+1}], s[{smask+2*r}:{smask+2*r+1}], s[{spend+2*r}:{spend+2*r+1}]
        s_mov_b64 exec, s[{stmp}:{stmp+1}]
        v_cmpx_gt_u32 vcc, s{scap}, v{k+1}
        v_mad_u32_u24 v{vt1}, v{vha+r}, {BINE}, v{k+1}
        s_xor_b64 s[{stmp}:{stmp+1}], s[{stmp}:{stmp+1}], exec
        ds_write_b32 v{vt1}, v{k} offset:{L_KEYS}
        s_or_b64 s[{sfull}:{sfull+1}], s[{sfull}:{sfull+1}], s[{stmp}:{stmp+1}]
        """)
    a("F_sweep:")
    done = []; wr = []
    for r in range(5):
        sync = str(r) in o.kw
        a(f"s_waitcnt vmcnt({(1 if o.tf else 2)*(4-r)})" + (" lgkmcnt(0)" if sync else ""))
        if o.f2 and r == 0: stamp(5)
        if o.f2 and r == 4: stamp(2)
        now = ([5, X0] if r == 0 else []) + [r]
        for x in now: pass1(x)
        if sync:
            for x in done: keyw(x)
            done = []
        done += now
    a(f"s_or_b64 s[{sovf}:{sovf+1}], s[{spend}:{spend+1}], s[{spend+2}:{spend+3}]")
    for r in range(2, NR0 + 1):
        a(f"s_or_b64 s[{sovf}:{sovf+1}], s[{sovf}:{sovf+1}], s[{spend+2*r}:{spend+2*r+1}]")
    a("s_cbranch_scc1 F_retry")
    if o.mall == 4:
        a(f"s_cmp_eq_u32 s{sw}, 11\ns_cbranch_scc1 F_prefetch\nF_prefetched:")
    a("s_waitcnt lgkmcnt(0)")
    for r in done: keyw(r)
    a(f"""
    s_cbranch_scc1 K2_setslow
    K2_setslow_ret:
    s_mov_b64 exec, -1
    v_and_b32 v{vt3}, 63, v0
    v_lshl_add_u32 v{vt3}, v{vt3}, 2, s{st0}
    v_mov_b32 v{vA}, {L_FLAG}
    s_waitcnt lgkmcnt(0)
    {f's_memrealtime s[{TS+6}:{TS+7}]' if o.f2 else ''}
    s_barrier
    """)
    stamp(6)
    if o.mall == 3:
        a(f"s_cmp_eq_u32 s{sw}, 11\ns_cbranch_scc1 F_prefetch\nF_prefetched:")
    vE = vW; c0 = vW + 16; c1 = vW + 17; c2 = vW + 18; c3 = vW + 19
    a(f"""
    s_cmp_lt_u32 s{sw}, {o.dw}
    s_cselect_b32 s{sn}, 64, 0
    s_cbranch_scc1 F_first
    F_compact:
    ds_read_b32 v{c0}, v{vcidx} offset:{L_CNT}
    ds_read_b64 v[{vA}:{vA+1}], v{vA}
    """)
    for j in range(1, 16):
        a(f"ds_read_b32 v{vE+j}, v{vt3} offset:{j*BINE*4}")
        if j == 13:
            a(f"""
            s_mov_b32 exec_lo, 0x00010001
            s_mov_b32 exec_hi, 0x00010001
            s_waitcnt lgkmcnt(13)
            v_max_u32 v{c0}, s{sn}, v{c0}
            s_mov_b64 exec, -1
            v_mov_b32 v{c1}, v{c0}
            """)
    a(f"""
    v_readfirstlane_b32 s{st1}, v{vA}
    v_readfirstlane_b32 s{smore}, v{vA+1}
    """)
    dpp_scan(a, c1, 16)
    a(f"""
    s_cmp_lg_u32 s{st1}, 0
    s_cbranch_scc1 K2_goslow
    v_readlane_b32 s{stot}, v{c1}, 15
    v_sub_u32 v{c1}, v{c1}, v{c0}
    v_mov_b32 v{vA}, 0x{DUMMY:x}
    s_mov_b32 exec_hi, 0xffff
    v_add_u32 v{vA+1}, s{stot}, v{vt3}
    s_waitcnt lgkmcnt(0)
    """)
    for j in range(1, 16):
        t = c2 if j & 1 else c3
        a(f"v_add_u32_dpp v{t}, v{c1}, v{vt3} row_newbcast:{j} row_mask:0xf bank_mask:0xf\nds_write_b32 v{t}, v{vE+j}")
    a(f"""
    ds_write_b32 v{vA+1}, v{vA}
    s_mov_b64 exec, -1
    s_sub_i32 s{sn}, s{stot}, 64
    s_mul_i32 s{sq}, s{stot}, {o.pth}
    s_lshr_b32 s{sq}, s{sq}, 4
    s_cmp_lt_u32 s{sw}, {o.dw}
    s_cbranch_scc1 F_wfrag
    """)
    def keys_read():
        a(f"""
        ds_read_b128 v[{vK}:{vK+3}], v{vka}
        ds_read_b128 v[{vK+4}:{vK+7}], v{vka} offset:32
        ds_read2_b32 v[{vKT}:{vKT+1}], v{vkt} offset0:0 offset1:4
        v_add_u32 v{vka}, 64, v{vka}
        v_add_u32 v{vkt}, 64, v{vkt}
        """)
    def addr_calc():
        for r in range(8):
            a(f"v_mad_u32_u16 v{vK+r}, v{vK+r}, s{s512}, v{vlo4}")
        for r in range(2):
            a(f"v_mad_u32_u16 v{vKT+r}, v{vKT+r}, 8, v{vKc} op_sel:[1,0,0,0]")
    def row_loads(r0, r1):
        for r in range(r0, r1):
            for q in range(4):
                a(f"buffer_load_dword v{vB+8*q+r}, v{vK+r}, s[{sX}:{sX+3}], 0 offen offset:{128*q}")
    a(f"""
    s_cmp_eq_u32 s{stot}, 0
    s_cbranch_scc1 F_wfrag
    F_first:
    s_setprio 3
    """)
    stamp(7); clk(0)
    keys_read()
    a("s_waitcnt lgkmcnt(0)")
    addr_calc()
    row_loads(0, 8)
    a(f"""
    s_cmp_lt_u32 s{sw}, {o.dw}
    s_cbranch_scc1 F_compact
    F_wfrag:
    v_bfe_u32 v{vA}, v0, 4, 2                      ; g
    v_bfe_u32 v{vA+1}, v0, 2, 2                    ; r
    v_lshl_add_u32 v{vA+2}, v{vA}, 3, v{vA+1}      ; 8g + r
    v_bfe_u32 v{vA+1}, v0, 2, 1
    v_lshl_add_u32 v{vA}, v{vA}, 2, v{vA+1}
    v_bfe_u32 v{vA+1}, v0, 3, 1
    v_lshl_add_u32 v{vA}, v{vA+1}, 6, v{vA}        ; 4g + (r&1) + 64(r>>1)
    s_and_b32 s3, s{sw}, 3
    s_lshl_b32 s3, s3, 5
    s_add_u32 s3, s3, {L_W}
    v_and_b32 v{vA+1}, 3, v0
    v_lshl_add_u32 v{vA+1}, v{vA+1}, 3, s3
    s_movk_i32 s3, {WSTR}
    v_mad_u32_u24 v{vA}, v{vA}, s3, v{vA+1}
    v_mad_u32_u24 v{vA+2}, v{vA+2}, s3, v{vA+1}
    """)
    for f in range(10):
        for tt in range(2):
            if f < 8: ad, off = vA, (128 * (f >> 2) + 16 * (f & 3) + 2 * tt) * WSTR
            else: ad, off = vA + 2, (256 + 32 * (f - 8) + 4 * tt) * WSTR
            a(f"ds_read_b64_tr_b16 v[{vW+4*f+2*tt}:{vW+4*f+2*tt+1}], v{ad} offset:{off}")
    a(f"""
    v_and_b32 v{vt0}, 15, v0
    v_bfe_u32 v{vt3}, v0, 4, 2
    s_lshr_b32 s{st0}, s{sw}, 2
    s_mul_i32 s3, s{st0}, {16*TSTR}
    s_add_u32 s3, s3, {L_T}
    v_mul_u32_u24 v{vra}, {TSTR}, v{vt0}
    v_lshl_add_u32 v{vra}, v{vt3}, 4, v{vra}
    v_add_u32 v{vra}, s3, v{vra}
    s_mul_i32 s{sgk}, s{st0}, {4*WREG}
    s_add_u32 s{sgk}, s{sgk}, {L_KEYS}
    s_and_b32 s{st1}, s{sw}, 3
    s_lshl_b32 s3, s{st1}, 5
    s_add_u32 s3, s3, s{sgk}
    v_mul_u32_u24 v{voa}, {OSTR}, v{vt0}
    v_lshl_add_u32 v{voa}, v{vt3}, 3, v{voa}
    v_add_u32 v{voa}, s3, v{voa}
    s_mul_i32 s3, s{sw}, {4*TSTR}
    s_add_u32 s3, s3, {L_T}
    v_bfe_u32 v{vt0}, v0, 5, 1
    v_mul_u32_u24 v{vt3}, {TSTR}, v{vt0}
    v_add3_u32 v{vwb}, v{vt3}, v{vlo4}, s3
    v_add_u32 v{vwa}, v{vwb}, v{vlo4}
    s_mul_i32 s3, s{st1}, {2*OSTR}
    s_add_u32 s3, s3, s{sgk}
    v_mul_u32_u24 v{vt3}, {OSTR}, v{vt0}
    v_lshl_add_u32 v{vt3}, v{vlo4}, 2, v{vt3}
    v_add_u32 v{vsr}, s3, v{vt3}
    s_lshl_b32 s3, s{st0}, 3
    s_add_u32 s3, s3, s{st1}
    s_lshl_b32 s3, s3, 9
    s_add_u32 s3, s3, s2
    s_lshl_b32 s3, s3, 9
    v_lshl_add_u32 v{vt3}, v{vlo4}, 2, s3
    v_lshl_add_u32 v{vso}, v{vt0}, 17, v{vt3}
    s_lshl_b32 s{sgk}, s{st0}, 2
    s_add_u32 s{sgk}, s{sgk}, {L_FLAG+16}
    v_mov_b32 v{vt0}, {L_FLAG+8}
    s_mov_b64 exec, 1
    s_waitcnt lgkmcnt(0)
    ds_add_u32 v{vt0}, v{vfour}
    s_mov_b64 exec, -1
    s_mul_i32 s3, s2, {o.alpha}
    s_sub_u32 s3, 0x10000, s3
    s_mul_i32 s3, s3, s{stot}
    s_lshr_b32 s3, s3, 16
    s_cmp_eq_u32 s{sw}, {o.tw}
    s_cselect_b32 s{sthr}, s3, 0xc0000000
    {'s_mov_b32 s5, 0' if o.fine else ''}
    s_cmp_eq_u32 s{stot}, 0
    s_cbranch_scc1 K2_done
    K2_loop:
    ds_read_b64_tr_b16 v[{vA}:{vA+1}], v{vKT}
    ds_read_b64_tr_b16 v[{vA+2}:{vA+3}], v{vKT+1}
    """)
    keys_read()
    a(f"""
    {f's_cmp_le_i32 s{sn}, s{sthr}' if PB else ''}
    {'s_cbranch_scc1 F_pfB' if PB else ''}
    F_pfB_ret:
    s_cmp_ge_i32 s{sn}, s{sq}
    s_cbranch_scc1 K2_prio
    s_setprio 2
    K2_prio:
    s_waitcnt lgkmcnt(0)
    """)
    addr_calc()
    a(f"s_cmp_le_i32 s{sn}, 0\ns_waitcnt vmcnt(0)")
    def smf(q):
        a(f"v_smfmac_f32_32x32x32_bf16 v[{vacc+16*q}:{vacc+16*q+15}], v[{vA}:{vA+3}], v[{vB+8*q}:{vB+8*q+7}], v{vidx}")
    if o.il:
        a("s_cbranch_scc1 K2_lastg")
        for q in range(4):
            smf(q)
            for r in range(o.il):
                a(f"buffer_load_dword v{vB+8*q+r}, v{vK+r}, s[{sX}:{sX+3}], 0 offen offset:{128*q}")
        row_loads(o.il, 4)
        a(f"s_sub_i32 s{sn}, s{sn}, 64\ns_cmp_le_i32 s{sn}, -32\ns_cbranch_scc1 K2_loop")
        row_loads(4, 8)
        a("s_branch K2_loop\nK2_lastg:")
    for q in range(4): smf(q)
    if o.fine:
        a("s_add_u32 s5, s5, 1")
        for k, it in enumerate(int(z) for z in o.fine.split(",")):
            a(f"s_cmp_eq_u32 s5, {it}\ns_cbranch_scc0 D_{k}")
            stamp(1 + k)
            a(f"D_{k}:")
        a(f"s_cmp_le_i32 s{sn}, 0")
    if o.il:
        a("s_branch K2_done")
    else:
        a("s_cbranch_scc1 K2_done")
        row_loads(0, 4)
        a(f"s_sub_i32 s{sn}, s{sn}, 64\ns_cmp_le_i32 s{sn}, -32\ns_cbranch_scc1 K2_loop")
        row_loads(4, 8)
        a("s_branch K2_loop")

    def tagpoll(name, ret):
        a(f"""
        {name}:
        s_mov_b32 s{spoll}, 0x40000
        v_mov_b32 v{vt0}, 0
        {name}_l:
        global_load_dword v{vt1}, v{vt0}, s[{sDBG}:{sDBG+1}] sc1
        s_waitcnt vmcnt(0)
        v_readfirstlane_b32 s{snonce}, v{vt1}
        s_cmp_lg_u32 s{snonce}, 0
        s_cbranch_scc1 {ret}
        s_sub_u32 s{spoll}, s{spoll}, 1
        s_cbranch_scc0 {name}_l
        s_endpgm
        """)
    h = vacc; hp = vW
    a(f"""
    F_helper:
    s_cmp_eq_u32 s{sw}, 10
    s_cbranch_scc1 F_scan0
    s_cmp_ge_u32 s2, {o.ncand}
    s_cbranch_scc1 F_h1
    s_memrealtime s[{smask+2}:{smask+3}]
    v_mov_b32 v{vt0}, 0
    s_waitcnt lgkmcnt(0)
    s_mul_i32 s3, s{smask+2}, 0x9e3779b1
    s_andn2_b32 s3, s3, 0x{ZM:x}
    s_or_b32 s3, s3, 1
    v_mov_b32 v{vt1}, s3
    v_mov_b32 v{vt2}, 0
    s_mov_b64 exec, 1
    {f'global_atomic_cmpswap v{vt0}, v[{vt1}:{vt2}], s[{sDBG}:{sDBG+1}] sc1' if o.ncand > 1 else f'global_store_dword v{vt0}, v{vt1}, s[{sDBG}:{sDBG+1}] sc1'}
    s_mov_b64 exec, -1
    F_h1:
    v_and_b32 v{vt0}, 63, v0
    v_lshlrev_b32 v{vt0}, 7, v{vt0}
    s_lshr_b32 s3, s2, 3
    s_lshl_b32 s{st0}, s3, 9
    v_add_u32 v{vt1}, s{st0}, v{vt0}
    s_mul_i32 s{st0}, s3, 768
    v_add_u32 v{vt2}, s{st0}, v{vt0}
    s_waitcnt lgkmcnt(0)
    s_mov_b64 exec, 15
    global_load_dword v{vpf}, v{vt1}, s[{sW0}:{sW0+1}]
    s_mov_b64 exec, 63
    global_load_dword v{vpf}, v{vt2}, s[{sW1}:{sW1+1}]
    s_mov_b64 exec, 31
    global_load_dword v{vpf}, v{vt0}, s[{sWR}:{sWR+1}]
    s_mov_b64 exec, -1
    """)
    a(f"""
    s_barrier
    s_branch F_early
    F_scan0:
    v_and_b32 v{h}, 63, v0
    v_lshlrev_b32 v{h+1}, 4, v{h}
    v_mov_b32 v{h+4}, 0
    v_mov_b32 v{h+5}, 0
    v_mov_b32 v{h+6}, 0
    v_mov_b32 v{h+7}, 0
    ds_write_b128 v{h+1}, v[{h+4}:{h+7}] offset:{P_HIST}
    s_waitcnt lgkmcnt(0)
    s_barrier
    s_branch F_early
    F_helper2:
    s_cmp_eq_u32 s{sw}, 10
    s_cbranch_scc1 F_scan
    s_barrier
    s_barrier
    s_load_dword s{snonce}, s[{sDBG}:{sDBG+1}], 0
    s_waitcnt lgkmcnt(0)
    s_cmp_lg_u32 s{snonce}, 0
    s_cbranch_scc1 F_out
    s_branch F_tagA
    """)
    a(f"""
    F_scan:
    v_and_b32 v{h}, 63, v0
    v_lshlrev_b32 v{h+1}, 4, v{h}
    s_lshl_b32 s3, s2, 11
    s_add_u32 s3, s3, {WS_OFF}
    v_add_u32 v{hp+8}, s3, v{h+1}
    v_and_b32 v{h+2}, 7, v{h}
    v_lshrrev_b32 v{h+3}, 3, v{h}
    v_lshlrev_b32 v{h+3}, 2, v{h+3}
    v_lshl_add_u32 v{h+2}, v{h+2}, 7, v{h+3}
    v_add_u32 v{h+3}, {P_BASE}, v{h+2}
    v_add_u32 v{h+2}, {P_HIST}, v{h+2}
    s_barrier
    ds_read2_b32 v[{h+4}:{h+5}], v{h+2} offset0:0 offset1:8
    ds_read2_b32 v[{h+6}:{h+7}], v{h+2} offset0:16 offset1:24
    s_waitcnt lgkmcnt(0)
    v_add_u32 v{h+9}, v{h+4}, v{h+5}
    v_add_u32 v{h+10}, v{h+9}, v{h+6}
    v_add_u32 v{h+11}, v{h+10}, v{h+7}
    v_mov_b32 v{h+12}, v{h+11}
    """)
    dpp_scan(a, h + 12)
    a(f"""
    v_sub_u32 v{h+16}, v{h+12}, v{h+11}
    v_add_u32 v{h+17}, v{h+16}, v{h+4}
    ds_write2_b32 v{h+3}, v{h+16}, v{h+17} offset0:0 offset1:8
    v_add_u32 v{h+18}, v{h+16}, v{h+9}
    v_add_u32 v{h+19}, v{h+16}, v{h+10}
    ds_write2_b32 v{h+3}, v{h+18}, v{h+19} offset0:16 offset1:24
    s_waitcnt lgkmcnt(0)
    s_barrier
    s_load_dword s{snonce}, s[{sDBG}:{sDBG+1}], 0
    v_lshl_or_b32 v{hp}, v{h+4}, 16, v{h+16}
    v_lshl_or_b32 v{hp+2}, v{h+5}, 16, v{h+17}
    v_lshl_or_b32 v{hp+4}, v{h+6}, 16, v{h+18}
    v_lshl_or_b32 v{hp+6}, v{h+7}, 16, v{h+19}
    s_waitcnt lgkmcnt(0)
    s_cmp_eq_u32 s{snonce}, 0
    s_cbranch_scc1 F_tagD
    F_tagD_ret:
    s_nop 1
    v_mov_b32 v{hp+1}, s{snonce}
    v_mov_b32 v{hp+3}, s{snonce}
    v_mov_b32 v{hp+5}, s{snonce}
    v_mov_b32 v{hp+7}, s{snonce}
    global_store_dwordx4 v{hp+8}, v[{hp}:{hp+3}], s[{sWS}:{sWS+1}] sc1
    global_store_dwordx4 v{hp+8}, v[{hp+4}:{hp+7}], s[{sWS}:{sWS+1}] offset:1024 sc1
    s_branch F_out
    """)
    if o.mall:
        base = 2048 * o.nl2
        per = o.na
        a(f"""
        F_prefetch:
        s_mov_b64 exec, -1
        v_and_b32 v{vt0}, 63, v0
        s_mul_i32 s3, s2, {per*128}
        s_add_u32 s3, s3, {base*128}
        v_lshl_add_u32 v{vt1}, v{vt0}, 7, s3
        """)
        for i in range(0, per, 64):
            n = min(64, per - i)
            if n < 64: a(f"v_cmp_gt_u32 vcc, {n}, v{vt0}\ns_mov_b64 exec, vcc")
            a(f"buffer_load_dword v{vpf}, v{vt1}, s[{sX}:{sX+3}], 0 offen\nv_add_u32 v{vt1}, 8192, v{vt1}")
        a("s_mov_b64 exec, -1\ns_branch F_prefetched")
        if PB:
            perb = PB
            a(f"""
            F_pfB:
            s_mov_b32 s{sthr}, 0xc0000000
            s_mul_i32 s3, s2, {perb*128}
            s_add_u32 s3, s3, {(base+256*o.na)*128}
            v_and_b32 v{vpg}, 63, v0
            v_lshl_add_u32 v{vpg}, v{vpg}, 7, s3
            """)
            for i in range(0, perb, 64):
                n = min(64, perb - i)
                if n < 64: a(f"s_bfm_b64 exec, {n}, 0")
                a(f"buffer_load_dword v{vpf}, v{vpg}, s[{sX}:{sX+3}], 0 offen\nv_add_u32 v{vpg}, 8192, v{vpg}")
            a("s_mov_b64 exec, -1\ns_branch F_pfB_ret")

    vP = vB; vD = vB + 16
    vF = vacc
    def arrive_wait(name, off, spec=None):
        a(f"""
        v_mov_b32 v{vt0}, s{sgk}
        s_mov_b64 exec, 1
        ds_add_rtn_u32 v{vt1}, v{vt0}, v{vfour} offset:{off}
        s_mov_b64 exec, -1
        """)
        if spec: spec()
        a(f"""
        s_waitcnt lgkmcnt({2 if spec else 0})
        v_readfirstlane_b32 s3, v{vt1}
        s_cmp_eq_u32 s3, 12
        s_cbranch_scc1 {name}_ok
        s_setprio 0
        {name}:
        ds_read_b32 v{vt1}, v{vt0} offset:{off}
        """)
        if spec: spec()
        a(f"""
        s_sub_u32 s{spoll}, s{spoll}, 1
        s_cbranch_scc1 F_end
        s_waitcnt lgkmcnt({2 if spec else 0})
        v_readfirstlane_b32 s3, v{vt1}
        s_cmp_lg_u32 s3, 16
        s_cbranch_scc1 {name}
        {name}_ok:
        s_setprio 1
        """)
    a(f"""
    K2_done:
    s_cmp_lg_u32 s{smore}, 0
    s_cbranch_scc1 K2_next
    s_cmp_eq_u32 s{sWin}, 1
    s_cbranch_scc1 K2_next
    K2_last:
    s_setprio 3
    """)
    stamp(8); clk(1)
    a(f"""
    s_mov_b32 s{spoll}, 0x1000000
    K2_guard:
    ds_read_b32 v{vt2}, v{vt0}
    s_sub_u32 s{spoll}, s{spoll}, 1
    s_cbranch_scc1 F_end
    s_nop 5
    s_waitcnt lgkmcnt(0)
    v_readfirstlane_b32 s3, v{vt2}
    s_cmp_lg_u32 s3, 48
    s_cbranch_scc1 K2_guard
    """)
    for cp in range(2):
        R = lambda p, q, pi: vacc + 16 * q + 8 * pi + 4 * cp + p
        cv = lambda d, p, q: a(f"v_cvt_pk_bf16_f32 v{d}, v{R(p,q,0)}, v{R(p,q,1)}")
        off = 2 * cp * TSTR
        for oo in (1, 2, 3):
            d = vP + 4 * oo
            cv(d, oo, 0); cv(d + 1, 0, oo)
            a(f"ds_write_b64 v{vwa}, v[{d}:{d+1}] offset:{off + 256 + 384*(oo-1)}")
        for pi in range(2):
            a(f"v_add_f32 v{R(1,1,pi)}, v{R(1,1,pi)}, v{R(2,2,pi)}")
            a(f"v_sub_f32 v{R(2,3,pi)}, v{R(2,3,pi)}, v{R(3,2,pi)}")
            a(f"v_sub_f32 v{R(3,1,pi)}, v{R(3,1,pi)}, v{R(1,3,pi)}")
            a(f"v_sub_f32 v{R(1,2,pi)}, v{R(1,2,pi)}, v{R(2,1,pi)}")
            a(f"v_add_f32 v{R(1,1,pi)}, v{R(1,1,pi)}, v{R(3,3,pi)}")
        cv(vP, 0, 0); cv(vP + 1, 1, 1)
        a(f"ds_write_b64 v{vwa}, v[{vP}:{vP+1}] offset:{off}")
        for oo, (p4, q4) in ((1, (2, 3)), (2, (3, 1)), (3, (1, 2))):
            d = vP + 4 * oo
            cv(d + 2, p4, q4)
            a(f"ds_write_b32 v{vwb}, v{d+2} offset:{off + 512 + 384*(oo-1)}")
    arrive_wait("K2_s1", 0)
    stamp(9)
    if o.g2:
        frs = [(0, ks) for ks in range(4)] + [(oo, ks) for oo in (1, 2, 3) for ks in range(6)]
        NF = len(frs); NB = 14
        lds_ops = []
        cnt = [0]
        def emit(x):
            a(x); cnt[0] += 1
            if x.startswith("ds_write"): lds_ops.append(-1)
        def rd(i):
            oo, ks = frs[i]
            off = 64 * ks + (0 if oo == 0 else 256 + 384 * (oo - 1))
            emit(f"ds_read_b128 v[{vF+4*(i%16)}:{vF+4*(i%16)+3}], v{vra} offset:{off}")
            lds_ops.append(i)
        def dpp(oo):
            return [f"s_cbranch_scc1 K2_g{oo}\n" + "".join(f"v_add_f32_dpp v{vD+4*oo+r}, v{vD+4*oo+r}, v{vD+4*oo+r} row_ror:8 row_mask:0xf bank_mask:0xf\n" for r in range(4)) + f"K2_g{oo}:"]
        def post(oo):
            d = vD + 4 * oo
            return dpp(oo) + [f"v_pk_mul_f32 v[{d}:{d+1}], v[{d}:{d+1}], v[{vP}:{vP+1}]", f"v_pk_mul_f32 v[{d+2}:{d+3}], v[{d+2}:{d+3}], v[{vP+2}:{vP+3}]",
                              f"v_cvt_pk_bf16_f32 v{d}, v{d}, v{d+1}", f"v_cvt_pk_bf16_f32 v{d+1}, v{d+2}, v{d+3}", f"ds_write_b64 v{voa}, v[{d}:{d+1}] offset:{128*oo}"]
        gate = (dpp(0) + [f"v_mul_f32 v{vP+r}, 0xbfb8aa3b, v{vD+r}" for r in range(4)] + [f"v_exp_f32 v{vP+r}, v{vP+r}" for r in range(4)] +
                [f"v_cvt_pk_bf16_f32 v{vP+4}, v{vD}, v{vD+1}"] +
                [f"v_pk_add_f32 v[{vP}:{vP+1}], v[{vP}:{vP+1}], 1.0 op_sel_hi:[1,0]", f"v_pk_add_f32 v[{vP+2}:{vP+3}], v[{vP+2}:{vP+3}], 1.0 op_sel_hi:[1,0]"] +
                [f"v_rcp_f32 v{vP+r}, v{vP+r}" for r in range(4)] +
                [f"v_cvt_pk_bf16_f32 v{vP+5}, v{vD+2}, v{vD+3}", f"ds_write_b64 v{voa}, v[{vP+4}:{vP+5}]"])
        work = [(x, 0) for x in gate] + [(x, 1) for x in post(1)] + [(x, 2) for x in post(2)] + [(x, 3) for x in post(3)]
        for i in range(NB): rd(i)
        a(f"s_cmp_lt_u32 s{sw}, 8")
        fin = {}
        for i in range(NF):
            oo, ks = frs[i]
            wreg = vW + 4 * (ks if oo == 0 else 4 + ks)
            if i % 2 == 0:
                need = lds_ops.index(min(i + 1, NF - 1))
                emit(f"s_waitcnt lgkmcnt({len(lds_ops) - 1 - need})")
            c = "0" if ks == 0 else f"v[{vD+4*oo}:{vD+4*oo+3}]"
            emit(f"v_mfma_f32_16x16x32_bf16 v[{vD+4*oo}:{vD+4*oo+3}], v[{wreg}:{wreg+3}], v[{vF+4*(i%16)}:{vF+4*(i%16)+3}], {c}")
            if i + 1 == NF or frs[i + 1][0] != oo: fin[oo] = cnt[0]
            if i >= 2 and i - 2 + NB < NF: rd(i - 2 + NB)
            n = 0
            while work and n < 2 and work[0][1] in fin and cnt[0] - fin[work[0][1]] >= 7:
                emit(work.pop(0)[0]); n += 1
        while work:
            gap = 7 - (cnt[0] - fin[work[0][1]])
            if gap > 0: a(f"s_nop {gap-1}"); cnt[0] += gap
            emit(work.pop(0)[0])
    else:
        frs = [(0, ks) for ks in range(4)] + [(oo, ks) for ks in range(6) for oo in (1, 2, 3)]
        NF = len(frs); NB = 12
        def rd(i):
            oo, ks = frs[i]
            off = 64 * ks + (0 if oo == 0 else 256 + 384 * (oo - 1))
            a(f"ds_read_b128 v[{vF+4*(i%16)}:{vF+4*(i%16)+3}], v{vra} offset:{off}")
        for i in range(NB): rd(i)
        a(f"s_cmp_lt_u32 s{sw}, 8")
        gate = ([f"v_mul_f32 v{vP+r}, 0xbfb8aa3b, v{vD+r}" for r in range(4)] + [f"v_exp_f32 v{vP+r}, v{vP+r}" for r in range(4)] +
                [f"v_add_f32 v{vP+r}, 1.0, v{vP+r}" for r in range(4)] + [f"v_rcp_f32 v{vP+r}, v{vP+r}" for r in range(4)] +
                [f"v_cvt_pk_bf16_f32 v{vP+4}, v{vD}, v{vD+1}", f"v_cvt_pk_bf16_f32 v{vP+5}, v{vD+2}, v{vD+3}"])
        for i in range(NF):
            oo, ks = frs[i]
            wreg = vW + 4 * (ks if oo == 0 else 4 + ks)
            a(f"s_waitcnt lgkmcnt({min(NB-1, NF-1-i)})")
            c = "0" if ks == 0 else f"v[{vD+4*oo}:{vD+4*oo+3}]"
            a(f"v_mfma_f32_16x16x32_bf16 v[{vD+4*oo}:{vD+4*oo+3}], v[{wreg}:{wreg+3}], v[{vF+4*(i%16)}:{vF+4*(i%16)+3}], {c}")
            if i + NB < NF: rd(i + NB)
            if i == 7:
                a("s_cbranch_scc1 K2_g0")
                for r in range(4):
                    a(f"v_add_f32_dpp v{vD+r}, v{vD+r}, v{vD+r} row_ror:8 row_mask:0xf bank_mask:0xf")
                a("K2_g0:")
            if i >= 8:
                for _ in range(2 if i < 12 else 1):
                    if gate: a(gate.pop(0))
        assert not gate
        a(f"""
        ds_write_b64 v{voa}, v[{vP+4}:{vP+5}]
        s_cbranch_scc1 K2_g1
        """)
        for r in range(4, 16):
            a(f"v_add_f32_dpp v{vD+r}, v{vD+r}, v{vD+r} row_ror:8 row_mask:0xf bank_mask:0xf")
        a("K2_g1:")
        for oo in range(1, 4):
            for r in range(4):
                a(f"v_mul_f32 v{vD+4*oo+r}, v{vP+r}, v{vD+4*oo+r}")
            a(f"v_cvt_pk_bf16_f32 v{vD+4*oo}, v{vD+4*oo}, v{vD+4*oo+1}\nv_cvt_pk_bf16_f32 v{vD+4*oo+1}, v{vD+4*oo+2}, v{vD+4*oo+3}")
            a(f"ds_write_b64 v{voa}, v[{vD+4*oo}:{vD+4*oo+1}] offset:{128*oo}")
    arrive_wait("K2_s2", 16, lambda: a(f"ds_read_b128 v[{vF}:{vF+3}], v{vsr}\nds_read_b128 v[{vF+4}:{vF+7}], v{vsr} offset:{8*OSTR}"))
    stamp(10)
    a(f"""
    s_cmp_ge_u32 s{sw}, 8
    s_mov_b32 s3, {8<<17}
    s_waitcnt lgkmcnt({0 if o.diag else 1})
    buffer_store_dwordx4 v[{vF}:{vF+3}], v{vso}, s[{sO}:{sO+3}], 0 offen {o.k2st}
    s_cbranch_scc1 K2_fin
    s_waitcnt lgkmcnt(0)
    buffer_store_dwordx4 v[{vF+4}:{vF+7}], v{vso}, s[{sO}:{sO+3}], s3 offen {o.k2st}
    K2_fin:
    """)
    if o.diag:
        a("s_waitcnt vmcnt(0)")
        stamp(11)
        a(f"""s_waitcnt lgkmcnt(0)
        s_mov_b64 exec, 1
        s_lshl_b32 s3, s2, 10
        s_add_u32 s3, s3, {WS_TS + 0x40000}
        s_lshl_b32 s{sw}, s{sw}, 6
        s_add_u32 s3, s3, s{sw}
        v_mov_b32 v{vt0}, s3""")
        for i in range(14):
            a(f"v_mov_b32 v{vt1}, s{TS+2*i}\nglobal_store_dword v{vt0}, v{vt1}, s[{sWS}:{sWS+1}] offset:{4*i}")
        a(f"v_mov_b32 v{vt1}, s0\nglobal_store_dword v{vt0}, v{vt1}, s[{sWS}:{sWS+1}] offset:56")
    a("F_end:\ns_endpgm")

    tagpoll("F_tagA", "F_out")
    tagpoll("F_tagD", "F_tagD_ret")
    a(f"""
    F_repoll:
    {'s_add_u32 s0, s0, 256' if o.diag else ''}
    buffer_load_dwordx2 v[{voffs}:{voffs+1}], v{vpa}, s[{sWS}:{sWS+3}], 0 offen sc1
    s_sub_u32 s{spoll}, s{spoll}, 1
    s_waitcnt vmcnt(0)
    s_cbranch_scc0 F_poll
    s_endpgm
    F_retry:
    {'s_add_u32 s0, s0, 1' if o.diag else ''}
    """)
    for r in range(NR0 + 1):
        a(f"""
        s_mov_b64 exec, s[{spend+2*r}:{spend+2*r+1}]
        s_cbranch_execz F_retry{r}
        """)
        recload(r)
        a(f"F_retry{r}:")
    a(f"""
    s_waitcnt vmcnt(0)
    s_sub_u32 s{spoll}, s{spoll}, 1
    s_cbranch_scc0 F_sweep
    s_endpgm
    K2_x1:
    """)
    rload(X1, vb1, vr1, 1)
    a(f"s_mov_b64 s[{spend+2*X1}:{spend+2*X1+1}], s[{smask+2*X1}:{smask+2*X1+1}]\nK2_x1_l:\ns_waitcnt vmcnt(0)")
    pass1(X1)
    a(f"""
    s_mov_b64 exec, s[{spend+2*X1}:{spend+2*X1+1}]
    s_cbranch_execz K2_x1_ok
    """)
    recload(X1)
    a(f"""
    s_sub_u32 s{spoll}, s{spoll}, 1
    s_cbranch_scc0 K2_x1_l
    s_endpgm
    K2_x1_ok:
    s_waitcnt lgkmcnt(0)
    """)
    keyw(X1)
    a(f"""
    s_mov_b64 exec, -1
    s_cmp_le_u32 s{st1}, 8
    s_cbranch_scc1 K2_x1_ret
    s_mov_b64 s[{sfull}:{sfull+1}], -1
    s_branch K2_x1_ret
    K2_setmore:
    v_mov_b32 v{vt0}, {L_FLAG}
    ds_write_b32 v{vt0}, v{vfour} offset:4
    s_branch K2_setmore_ret
    K2_setslow:
    s_mov_b64 exec, -1
    v_mov_b32 v{vt0}, {L_FLAG}
    ds_write_b32 v{vt0}, v{vfour}
    s_branch K2_setslow_ret
    K2_goslow:
    s_cmp_eq_u32 s{sWin}, 1
    s_cbranch_scc1 F_end
    s_movk_i32 s{sWin}, 1
    s_mov_b32 s{scol}, 0x00010001
    s_mov_b32 s{scol+1}, 0x00010001
    s_branch K2_again
    K2_next:
    s_cmp_lg_u32 s{sWin}, 1
    s_cbranch_scc1 K2_advance
    s_lshl_b64 s[{scol}:{scol+1}], s[{scol}:{scol+1}], 1
    s_cmp_lg_u32 s{scol}, 0x00400040
    s_cbranch_scc1 K2_again
    s_cmp_eq_u32 s{smore}, 0
    s_cbranch_scc1 K2_last
    s_mov_b32 s{scol}, 0x00010001
    s_mov_b32 s{scol+1}, 0x00010001
    K2_advance:
    s_add_u32 s{sI0}, s{sI0}, s{sWin}
    K2_again:
    s_nop 7
    s_nop 7
    s_waitcnt vmcnt(0) lgkmcnt(0)
    s_barrier
    """)
    batch_init()
    a(f"""
    s_waitcnt lgkmcnt(0)
    s_barrier
    F_last:
    s_branch F_polled
    """)
    return a.text(), nv, 102, lds

def main():
    ap = argparse.ArgumentParser()
    ap.add_argument("-o", default=f"cdna_kernels/{NAME}.s")
    ap.add_argument("--k1ld", default="")
    ap.add_argument("--k2st", default="sc1 nt")
    ap.add_argument("--diag", action="store_true")
    ap.add_argument("--mall", type=int, default=4)
    ap.add_argument("--pth", type=int, default=8)
    ap.add_argument("--g2", type=int, default=0)
    ap.add_argument("--pj", type=int, default=4)
    ap.add_argument("--pv", type=int, default=1)
    ap.add_argument("--pl", type=int, default=1)
    ap.add_argument("--r1late", type=int, default=0)
    ap.add_argument("--pt", type=int, default=0, help="lines of e_attr (x2 src, x3 rhat) touched early")
    ap.add_argument("--ptw", type=int, default=0)
    ap.add_argument("--csplit", type=int, default=2)
    ap.add_argument("--ctall", type=int, default=1)
    ap.add_argument("--ncand", type=int, default=8)
    ap.add_argument("--tf", type=int, default=0)
    ap.add_argument("--f2", type=int, default=0)
    ap.add_argument("--pre", type=int, default=0)
    ap.add_argument("--rprio", default="")
    ap.add_argument("--wb", type=int, default=0)
    ap.add_argument("--recld", default="")
    ap.add_argument("--b96", type=int, default=0)
    ap.add_argument("--nl2", type=int, default=0)
    ap.add_argument("--w0", type=int, default=0)
    ap.add_argument("--il", type=int, default=0)
    ap.add_argument("--kw", default="")
    ap.add_argument("--dw", type=int, default=4)
    ap.add_argument("--fine", default="")
    ap.add_argument("--na", type=int, default=64)
    ap.add_argument("--tw", type=int, default=0)
    ap.add_argument("--alpha", type=int, default=128)
    o = ap.parse_args()
    k, nv, ns, lds = gen(o)
    hdr = open(f"cdna_kernels/{NAME}.s.ref").read().split("; Override launch")[0]
    kn = f"{NAME}_kernel"
    nv8 = (nv + 7) // 8 * 8
    s = hdr
    if o.diag: s += "; diag: n1=0 n2=12 nw=12 m0=7 fused=1\n"
    s += f"; @launch grid=(256,1,1) block=(768,1,1) lds={lds}\n"
    s += '.amdgcn_target "amdgcn-amd-amdhsa--gfx950"\n.text\n'
    s += f".globl {kn}\n.p2align 8\n.type {kn},@function\n{kn}:\n{k}"
    s += f""".section .rodata,"a"
.p2align 6
.amdhsa_kernel {kn}
  .amdhsa_next_free_vgpr {nv8}
  .amdhsa_next_free_sgpr {ns}
  .amdhsa_accum_offset {nv8}
  .amdhsa_group_segment_fixed_size 0
  .amdhsa_kernarg_size 96
  .amdhsa_user_sgpr_count 2
  .amdhsa_user_sgpr_kernarg_segment_ptr 1
  .amdhsa_system_sgpr_workgroup_id_x 1
.end_amdhsa_kernel
"""
    open(o.o, "w").write(s)
    print(f"wrote {o.o}: vgpr {nv} lds {lds}")

if __name__ == "__main__":
    main()
```
